```python
import torch

def _softmax(x, axis=-1):
    return torch.softmax(x, dim=axis)
def _gelu(x):
    return torch.nn.functional.gelu(x, approximate="tanh")
def _silu(x):
    return torch.nn.functional.silu(x)
def _sigmoid(x):
    return torch.sigmoid(x)
def _layernorm(x, axis=-1, eps=1e-5):
    m = x.mean(dim=axis, keepdim=True)
    v = x.var(dim=axis, keepdim=True, unbiased=False)
    return (x - m) / torch.sqrt(v + eps)
def _scatter_add(tgt, idx, src, axis=0):
    return tgt.clone().index_add_(axis, idx, src)
def _segment_sum(src, seg, n):
    out = torch.zeros((n,) + src.shape[1:], dtype=src.dtype)
    return out.index_add_(0, seg, src)
def _pad(x, pw):
    flat = tuple(v for pair in reversed(pw) for v in pair)
    return torch.nn.functional.pad(x, flat)

kernel_name = 'standalone__gqa_block_cached__near_ridge'

def setup_inputs():

    _w = (lambda a: (lambda t: t.to(torch.bfloat16) if t.is_floating_point() else t)(torch.as_tensor(a)))
    B, Sq, D = 16, 48, 448
    Hq, Hkv, Sk, Dh = 16, 8, 48, 256
    assert Hq % Hkv == 0, (Hq, Hkv)
    return {
        "x": _w((lambda *s: torch.randn(*s, dtype=torch.bfloat16) * 0.8)(B, Sq, D)),
        "k_cache": _w((lambda *s: torch.randn(*s, dtype=torch.bfloat16) * 0.8)(B, Hkv, Sk, Dh)),
        "v_cache": _w((lambda *s: torch.randn(*s, dtype=torch.bfloat16) * 0.05)(B, Hkv, Sk, Dh)),
        "wq": _w((lambda *s: torch.randn(*s, dtype=torch.bfloat16) * 0.8)(D, Hq * Dh) * (D ** -0.5)),
        "wo": _w((lambda *s: torch.randn(*s, dtype=torch.bfloat16) * 0.05)(Hq * Dh, D) * ((Hq * Dh) ** -0.5)),
    }

def reference(x, k_cache, v_cache, wq, wo):
    B, Sq, D = x.shape
    Hq, Dh = 16, 256
    Hkv = k_cache.shape[1]
    rep = Hq // Hkv
    q = (lambda x, *d: x.permute(*d))((x @ wq).reshape(B, Sq, Hq, Dh), 0, 2, 1, 3)
    k = (lambda x, n, axis: torch.repeat_interleave(x, n, dim=axis))(k_cache, rep, axis=1)
    v = (lambda x, n, axis: torch.repeat_interleave(x, n, dim=axis))(v_cache, rep, axis=1)
    scores = torch.einsum("bhqd,bhkd->bhqk", q, k) * (Dh ** -0.5)
    p = _softmax(scores, axis=-1)
    o = torch.einsum("bhqk,bhkd->bhqd", p, v)
    return (lambda x, *d: x.permute(*d))(o, 0, 2, 1, 3).reshape(B, Sq, Hq * Dh) @ wo
```

```python
import sys
OUT = sys.argv[1]
STAMPS = 'stamps' in sys.argv[2:]
NOMFMA = 'nomfma' in sys.argv[2:]
NOREAD = 'noread' in sys.argv[2:]
L = []
def e(s): L.append(s)
nst = [0]
def stamp():
    if not STAMPS: return
    i = nst[0]; nst[0] += 1
    e(f"s_memrealtime s[{70+2*i}:{71+2*i}]")
    e("s_waitcnt lgkmcnt(0)")

XB = 0; SB = 0; PB = 36864; OB = 0
RING = 43008; RSZ = 28672
LDS = RING + 4 * RSZ

e(f"; @launch grid=(256,1,1) block=(512,1,1) lds={LDS}")
e(""".amdgcn_target "amdgcn-amd-amdhsa--gfx950"
.text
.globl standalone__gqa_block_cached__near_ridge_kernel
.p2align 8
.type standalone__gqa_block_cached__near_ridge_kernel,@function
standalone__gqa_block_cached__near_ridge_kernel:""")
e("s_cmp_ge_u32 s2, 256")
e("s_cbranch_scc1 L_end")
if STAMPS: e("s_memrealtime s[92:93]")
e("s_load_dwordx8 s[40:47], s[0:1], 0")
e("s_load_dwordx8 s[48:55], s[0:1], 32")
e("s_and_b32 s3, s2, 7")
e("s_lshr_b32 s4, s2, 3")
e("s_and_b32 s4, s4, 15")
e("s_lshr_b32 s5, s2, 7")
e("s_lshl_b32 s6, s3, 1")
e("s_add_u32 s5, s5, s6")
e("v_lshrrev_b32 v1, 6, v0")
e("v_and_b32 v2, 63, v0")
e("v_and_b32 v3, 15, v2")
e("v_readfirstlane_b32 s6, v1")
e("v_lshrrev_b32 v4, 4, v2")
e("s_and_b32 s7, s6, 3")
e(f"s_mul_i32 s58, s7, {RSZ}")
e(f"s_add_u32 s58, s58, {RING}")
e("s_lshl_b32 s56, s4, 3")
e("s_add_u32 s56, s56, s3")
e("s_mul_i32 s56, s56, 24576")
e("s_lshl_b32 s57, s7, 7")
e("s_add_u32 s56, s56, s57")
e("s_cmp_ge_u32 s4, 7")
e("s_cselect_b32 s61, 7, 0")
e("s_sub_u32 s62, s4, s61")
e("s_cmp_ge_u32 s62, 7")
e("s_cselect_b32 s61, 7, 0")
e("s_sub_u32 s62, s62, s61")
e("s_and_b32 s63, s4, 7")
e("s_waitcnt lgkmcnt(0)")
def srd(s, p, n):
    e(f"s_mov_b32 s{s}, s{p}"); e(f"s_mov_b32 s{s+1}, s{p+1}"); e(f"s_mov_b32 s{s+2}, {n}"); e(f"s_mov_b32 s{s+3}, 0x20000")
e("s_cmp_ge_u32 s6, 4")
e("s_cbranch_scc1 L_loader")

srd(32, 50, 16*48*448*2)
srd(28, 54, 256*86016)
e("s_mov_b32 s36, s52"); e("s_mov_b32 s37, s53")
e("s_mov_b32 s38, s54"); e("s_mov_b32 s39, s55")
e("v_lshrrev_b32 v17, 2, v3")
e("v_and_b32 v18, 3, v3")
e("v_lshlrev_b32 v18, 3, v18")
e("v_add_u32 v18, s58, v18")
e("v_lshrrev_b32 v19, 1, v17")
e("v_and_b32 v24, 1, v4")
e("v_lshl_add_u32 v19, v24, 1, v19")
e("v_lshl_add_u32 v24, v4, 3, v17")
e("v_lshl_add_u32 v24, v24, 7, v18")
for j in range(4):
    e(f"v_xor_b32 v25, {j}, v19")
    e(f"v_lshl_add_u32 v{20+j}, v25, 5, v24")
e("v_lshrrev_b32 v19, 1, v17")
e("v_lshl_add_u32 v19, v4, 1, v19")
e("v_and_b32 v19, 3, v19")
e("v_lshl_add_u32 v28, v4, 2, v17")
e("v_lshl_add_u32 v29, v28, 7, v18")
for t in range(4):
    e(f"v_xor_b32 v30, {t}, v19")
    e(f"v_lshl_add_u32 v{24+t}, v30, 5, v29")
e("v_mul_u32_u24 v28, 224, v28")
e("v_add_u32 v28, v28, v18")
e("v_lshrrev_b32 v10, 1, v3")
e("v_xor_b32 v10, v10, v4")
e("v_lshlrev_b32 v10, 4, v10")
e("v_lshl_add_u32 v10, v3, 7, v10")
e("v_xor_b32 v11, 64, v10")
e("v_add_u32 v16, s58, v10")
e("v_xor_b32 v17, 64, v16")
e("v_lshlrev_b32 v29, 4, v2")
e("v_lshlrev_b32 v30, 3, v2")
ACC = 32; XF = 80; WF = 104
for i in range(48): e(f"v_mov_b32 v{ACC+i}, 0")
e("s_mov_b32 s59, 0")
e("s_mul_i32 s60, s62, 6144")
def readsA(buf, par):
    for j in range(4):
        e(f"v_add_u32 v{12+j}, s59, v{20+j}")
    e(f"v_add_u32 v18, s60, v{10+par}")
    for mt in range(3):
        r = XF + buf*12 + mt*4
        e(f"ds_read_b128 v[{r}:{r+3}], v18 offset:{mt*2048}")
    for j in range(4):
        for q2 in range(2):
            r = WF + buf*16 + j*4 + q2*2
            if not NOREAD: e(f"ds_read_b64_tr_b16 v[{r}:{r+1}], v{12+j} offset:{q2*512}")
    e("s_add_u32 s59, s59, 4096")
    e(f"s_cmp_eq_u32 s59, {RSZ}")
    e("s_cselect_b32 s59, 0, s59")
    if par == 1:
        e("s_add_u32 s60, s60, 6144")
        e("s_cmp_eq_u32 s60, 43008")
        e("s_cselect_b32 s60, 0, s60")
def mfmaA(buf):
    if NOMFMA: return
    for j in range(4):
        for mt in range(3):
            acc = ACC + (j*3+mt)*4
            wa = WF + buf*16 + j*4
            xb = XF + buf*12 + mt*4
            e(f"v_mfma_f32_16x16x32_bf16 v[{acc}:{acc+3}], v[{wa}:{wa+3}], v[{xb}:{xb+3}], v[{acc}:{acc+3}]")
e("s_barrier")
stamp()
readsA(0, 0)
e("s_waitcnt lgkmcnt(0)")
e("s_mov_b32 s64, 6")
e("L_loopA:")
e("s_barrier")
readsA(1, 1)
mfmaA(0)
e("s_waitcnt lgkmcnt(0)")
e("s_barrier")
readsA(0, 0)
mfmaA(1)
e("s_sub_u32 s64, s64, 1")
e("s_waitcnt lgkmcnt(0)")
e("s_cmp_lg_u32 s64, 0")
e("s_cbranch_scc1 L_loopA")
e("s_barrier")
readsA(1, 1)
mfmaA(0)
e("s_waitcnt lgkmcnt(0)")
e("s_barrier")
mfmaA(1)
e("s_nop 7")
stamp()
e("s_nop 1")
QP = 160
for u in range(2):
    for mt in range(3):
        for hf in range(2):
            acc = ACC + ((2*u+hf)*3+mt)*4
            d = QP + (u*3+mt)*4 + hf*2
            e(f"v_cvt_pk_bf16_f32 v{d}, v{acc}, v{acc+1}")
            e(f"v_cvt_pk_bf16_f32 v{d+1}, v{acc+2}, v{acc+3}")
SA = 184
KF = 136
for kt in range(3):
    for u in range(2):
        r = KF + (kt*2+u)*4
        e(f"ds_read_b128 v[{r}:{r+3}], v{16+u} offset:{kt*2048}")
e("s_nop 1")
for n in range(6):
    for i in range(2):
        e(f"v_permlane32_swap_b32 v{QP+n*4+i}, v{QP+n*4+2+i}")
e("s_nop 1")
for n in range(6):
    for i in range(2):
        e(f"v_permlane16_swap_b32 v{QP+n*4+i}, v{QP+n*4+2+i}")
e("s_waitcnt lgkmcnt(0)")
e("s_nop 1")
for u in range(2):
    for kt in range(3):
        for mt in range(3):
            acc = SA + (kt*3+mt)*4
            ka = KF + (kt*2+u)*4
            qb = QP + (u*3+mt)*4
            c = "0" if u == 0 else f"v[{acc}:{acc+3}]"
            e(f"v_mfma_f32_16x16x32_bf16 v[{acc}:{acc+3}], v[{ka}:{ka+3}], v[{qb}:{qb+3}], {c}")
e("s_mul_i32 s64, s7, 9216")
e("v_add_u32 v31, s64, v29")
e("s_nop 7")
for t in range(9):
    e(f"ds_write_b128 v31, v[{SA+t*4}:{SA+t*4+3}] offset:{SB + t*1024}")
e("s_waitcnt lgkmcnt(0)")
e("s_barrier")
e("s_cmp_ge_u32 s7, 3")
e("s_cbranch_scc1 L_smdone")
e("s_lshl_b32 s64, s7, 10")
e("v_add_u32 v31, s64, v29")
T = 32
for w in range(4):
    for kt in range(3):
        r = T + (w*3+kt)*4
        e(f"ds_read_b128 v[{r}:{r+3}], v31 offset:{SB + (w*9 + kt*3)*1024}")
e("s_waitcnt lgkmcnt(0)")
for k in (12, 24, 36):
    for i in range(12):
        e(f"v_add_f32 v{T+i}, v{T+i}, v{T+k+i}")
for i in range(6):
    e(f"v_cvt_pk_bf16_f32 v{T+12+i}, v{T+2*i}, v{T+2*i+1}")
for i in range(6):
    e(f"v_lshlrev_b32 v{T+2*i}, 16, v{T+12+i}")
    e(f"v_and_b32 v{T+2*i+1}, 0xffff0000, v{T+12+i}")
M = T + 24
e(f"v_max3_f32 v{M}, v{T}, v{T+1}, v{T+2}")
e(f"v_max3_f32 v{M+1}, v{T+3}, v{T+4}, v{T+5}")
e(f"v_max3_f32 v{M+2}, v{T+6}, v{T+7}, v{T+8}")
e(f"v_max3_f32 v{M+3}, v{T+9}, v{T+10}, v{T+11}")
e(f"v_max3_f32 v{M}, v{M}, v{M+1}, v{M+2}")
e(f"v_max_f32 v{M}, v{M}, v{M+3}")
def xreduce(op, R, Tm):
    e(f"v_mov_b32 v{Tm}, v{R}")
    e("s_nop 1")
    e(f"v_permlane32_swap_b32 v{R}, v{Tm}")
    e(f"v_{op}_f32 v{R}, v{R}, v{Tm}")
    e(f"v_mov_b32 v{Tm}, v{R}")
    e("s_nop 1")
    e(f"v_permlane16_swap_b32 v{R}, v{Tm}")
    e(f"v_{op}_f32 v{R}, v{R}, v{Tm}")
xreduce('max', M, M+1)
e("s_mov_b32 s64, 0x3db8aa3b")
for i in range(12):
    e(f"v_sub_f32 v{T+i}, v{T+i}, v{M}")
for i in range(12):
    e(f"v_mul_f32 v{T+i}, s64, v{T+i}")
for i in range(12):
    e(f"v_exp_f32 v{T+i}, v{T+i}")
e("s_nop 0")
S_ = M + 2
e(f"v_add_f32 v{S_}, v{T}, v{T+1}")
for i in range(2, 12):
    e(f"v_add_f32 v{S_}, v{S_}, v{T+i}")
xreduce('add', S_, S_+1)
e(f"v_rcp_f32 v{S_}, v{S_}")
e("s_nop 0")
for i in range(12):
    e(f"v_mul_f32 v{T+i}, v{T+i}, v{S_}")
for i in range(6):
    e(f"v_cvt_pk_bf16_f32 v{T+12+i}, v{T+2*i}, v{T+2*i+1}")
e("s_mul_i32 s64, s7, 1536")
e("v_add_u32 v31, s64, v29")
e(f"ds_write_b128 v31, v[{T+12}:{T+15}] offset:{PB}")
e("v_add_u32 v31, s64, v30")
e(f"ds_write_b64 v31, v[{T+16}:{T+17}] offset:{PB+1024}")
e("s_waitcnt lgkmcnt(0)")
e("L_smdone:")
e("s_barrier")
PF = 32
for mt in range(3):
    e(f"ds_read_b128 v[{PF+mt*6}:{PF+mt*6+3}], v29 offset:{PB + mt*1536}")
    e(f"ds_read_b64 v[{PF+mt*6+4}:{PF+mt*6+5}], v30 offset:{PB + mt*1536 + 1024}")
VF = 52
VPOS = 6144
for t in range(4):
    for kk in range(3):
        r = VF + t*6 + kk*2
        e(f"ds_read_b64_tr_b16 v[{r}:{r+1}], v{24+t} offset:{VPOS + kk*2048}")
e("s_waitcnt lgkmcnt(0)")
OA = 80
for t in range(4):
    for mt in range(3):
        acc = OA + (t*3+mt)*4
        e(f"v_mfma_f32_16x16x32_bf16 v[{acc}:{acc+3}], v[{VF+t*6}:{VF+t*6+3}], v[{PF+mt*6}:{PF+mt*6+3}], 0")
for t in range(4):
    for mt in range(3):
        acc = OA + (t*3+mt)*4
        e(f"v_mfma_f32_16x16x16_bf16 v[{acc}:{acc+3}], v[{VF+t*6+4}:{VF+t*6+5}], v[{PF+mt*6+4}:{PF+mt*6+5}], v[{acc}:{acc+3}]")
e("s_mul_i32 s64, s7, 6144")
e("v_add_u32 v31, s64, v29")
e("s_nop 7")
OP = 128
for u in range(2):
    for mt in range(3):
        for hf in range(2):
            acc = OA + ((2*u+hf)*3+mt)*4
            d = OP + (u*3+mt)*4 + hf*2
            e(f"v_cvt_pk_bf16_f32 v{d}, v{acc}, v{acc+1}")
            e(f"v_cvt_pk_bf16_f32 v{d+1}, v{acc+2}, v{acc+3}")
for i in range(6):
    e(f"ds_write_b128 v31, v[{OP+i*4}:{OP+i*4+3}] offset:{OB + i*1024}")
e("s_waitcnt lgkmcnt(0)")
e("s_barrier")
stamp()
DACC = 32; OF = 116; WO = 140
for i in range(84): e(f"v_mov_b32 v{DACC+i}, 0")
e("s_mov_b32 s59, 12288")
e("s_mul_i32 s60, s63, 3072")
def readsD(buf):
    e(f"v_add_u32 v13, s59, v28")
    e(f"v_add_u32 v12, s60, v29")
    for mt in range(3):
        r = OF + buf*12 + mt*4
        e(f"ds_read_b128 v[{r}:{r+3}], v12 offset:{OB + mt*1024}")
    for j in range(7):
        for q2 in range(2):
            r = WO + buf*28 + j*4 + q2*2
            if not NOREAD: e(f"ds_read_b64_tr_b16 v[{r}:{r+1}], v13 offset:{j*32 + q2*3584}")
    e("s_add_u32 s60, s60, 3072")
    e("s_cmp_eq_u32 s60, 24576")
    e("s_cselect_b32 s60, 0, s60")
    e("s_add_u32 s59, s59, 7168")
    e(f"s_cmp_gt_u32 s59, {RSZ-7168}")
    e("s_cselect_b32 s59, 0, s59")
def mfmaD(buf):
    if NOMFMA: return
    for j in range(7):
        for mt in range(3):
            acc = DACC + (j*3+mt)*4
            wa = WO + buf*28 + j*4
            ob = OF + buf*12 + mt*4
            e(f"v_mfma_f32_16x16x32_bf16 v[{acc}:{acc+3}], v[{wa}:{wa+3}], v[{ob}:{ob+3}], v[{acc}:{acc+3}]")
readsD(0)
e("s_waitcnt lgkmcnt(0)")
e("s_mov_b32 s64, 3")
e("L_loopD:")
e("s_barrier")
readsD(1)
mfmaD(0)
e("s_waitcnt lgkmcnt(0)")
e("s_barrier")
readsD(0)
mfmaD(1)
e("s_sub_u32 s64, s64, 1")
e("s_waitcnt lgkmcnt(0)")
e("s_cmp_lg_u32 s64, 0")
e("s_cbranch_scc1 L_loopD")
e("s_barrier")
readsD(1)
mfmaD(0)
e("s_waitcnt lgkmcnt(0)")
mfmaD(1)
e("s_nop 7")
stamp()
e("s_lshl_b32 s59, s4, 4")
e("s_add_u32 s59, s59, s5")
e("s_mul_i32 s59, s59, 86016")
e("s_mul_i32 s64, s7, 21504")
e("s_add_u32 s59, s59, s64")
e("v_add_u32 v31, s59, v29")
for t in range(21):
    if t % 4 == 0 and t > 0:
        e("v_add_u32 v31, 4096, v31")
    e(f"buffer_store_dwordx4 v[{DACC+t*4}:{DACC+t*4+3}], v31, s[28:31], 0 offen offset:{(t%4)*1024} sc1")
e("s_waitcnt vmcnt(0)")
e("s_barrier")
stamp()
e("s_lshl_b32 s59, s4, 2")
e("v_mov_b32 v32, s59")
e("v_mov_b32 v33, 1")
e("s_cmp_lg_u32 s7, 0")
e("s_cbranch_scc1 L_waitdone")
e("v_cmp_eq_u32 vcc, 0, v2")
e("s_and_saveexec_b64 s[64:65], vcc")
e("global_atomic_add v32, v33, s[36:37] sc1")
e("L_poll:")
e("global_load_dword v34, v32, s[36:37] sc1")
e("s_waitcnt vmcnt(0)")
e("v_readfirstlane_b32 s59, v34")
e("s_cmp_ge_u32 s59, 16")
e("s_cbranch_scc1 L_polldone")
e("s_sleep 1")
e("s_branch L_poll")
e("L_polldone:")
e("s_mov_b64 exec, s[64:65]")
e("L_waitdone:")
e("s_barrier")
stamp()
e("s_mul_i32 s59, s5, 336")
e("v_add_u32 v32, s59, v0")
e("s_mul_i32 s64, s4, 16*86016")
def reduce_item(itemreg, base):
    e(f"v_lshlrev_b32 v{base}, 4, v{itemreg}")
    e(f"v_add_u32 v{base}, s64, v{base}")
    e("s_mov_b32 s65, 0")
    for hh in range(16):
        e(f"buffer_load_dwordx4 v[{base+4+hh*4}:{base+7+hh*4}], v{base}, s[28:31], s65 offen sc1")
        e(f"s_add_u32 s65, s65, 86016")
def finish_item(itemreg, base):
    for hh in range(1, 16):
        for c in range(4):
            e(f"v_add_f32 v{base+4+c}, v{base+4+c}, v{base+4+hh*4+c}")
    e(f"v_cvt_pk_bf16_f32 v{base+4}, v{base+4}, v{base+5}")
    e(f"v_cvt_pk_bf16_f32 v{base+5}, v{base+6}, v{base+7}")
    e(f"v_lshrrev_b32 v{base+8}, 6, v{itemreg}")
    e(f"v_mul_u32_u24 v{base+9}, 43691, v{base+8}")
    e(f"v_lshrrev_b32 v{base+9}, 17, v{base+9}")
    e(f"v_mul_u32_u24 v{base+10}, 3, v{base+9}")
    e(f"v_sub_u32 v{base+10}, v{base+8}, v{base+10}")
    e(f"v_and_b32 v{base+11}, 15, v{itemreg}")
    e(f"v_lshl_add_u32 v{base+10}, v{base+10}, 4, v{base+11}")
    e(f"v_bfe_u32 v{base+11}, v{itemreg}, 4, 2")
    e(f"v_lshlrev_b32 v{base+11}, 2, v{base+11}")
    e(f"v_lshl_add_u32 v{base+9}, v{base+9}, 4, v{base+11}")
    e(f"s_mul_i32 s65, s4, 48")
    e(f"v_add_u32 v{base+10}, s65, v{base+10}")
    e(f"v_mul_u32_u24 v{base+10}, 448, v{base+10}")
    e(f"v_add_lshl_u32 v{base+10}, v{base+10}, v{base+9}, 1")
    e(f"buffer_store_dwordx2 v[{base+4}:{base+5}], v{base+10}, s[32:35], 0 offen")
reduce_item(32, 36)
e("v_add_u32 v33, 256, v32")
e("s_cmp_ge_u32 s7, 2")
e("s_cbranch_scc1 L_noitem2")
e("v_cmp_gt_u32 vcc, 80, v0")
e("s_and_saveexec_b64 s[66:67], vcc")
e("s_cbranch_execz L_r2")
reduce_item(33, 136)
e("s_waitcnt vmcnt(0)")
finish_item(33, 136)
e("L_r2:")
e("s_mov_b64 exec, s[66:67]")
e("L_noitem2:")
e("s_waitcnt vmcnt(0)")
finish_item(32, 36)
if STAMPS:
    e("s_waitcnt vmcnt(0)")
    e("s_memrealtime s[94:95]")
    e("s_waitcnt lgkmcnt(0)")
    e("v_cmp_eq_u32 vcc, 0, v0")
    e("s_and_saveexec_b64 s[30:31], vcc")
    e("s_cbranch_execz L_end")
    e("s_lshl_b32 s3, s2, 4")
    e("s_add_u32 s3, s3, 0xC800000")
    e("v_mov_b32 v1, s3")
    e("v_mov_b32 v4, s92"); e("v_mov_b32 v5, s93"); e("v_mov_b32 v6, s94"); e("v_mov_b32 v7, s95")
    e("global_store_dwordx4 v1, v[4:7], s[38:39]")
    for i in range(0, nst[0], 2):
        e("v_add_u32 v1, 0x10000, v1")
        e(f"v_mov_b32 v4, s{70+2*i}"); e(f"v_mov_b32 v5, s{71+2*i}"); e(f"v_mov_b32 v6, s{72+2*i}"); e(f"v_mov_b32 v7, s{73+2*i}")
        e("global_store_dwordx4 v1, v[4:7], s[38:39]")
e("s_endpgm")

e("L_loader:")
srd(16, 40, 16*48*448*2)
srd(24, 44, 16*8*48*256*2)
srd(20, 42, 16*8*48*256*2)
srd(8, 46, 448*4096*2)
srd(12, 48, 4096*448*2)
e("v_lshrrev_b32 v8, 3, v2")
e("v_mul_u32_u24 v5, 896, v8")
e("v_and_b32 v6, 7, v2")
e("v_xor_b32 v6, v6, v4")
e("v_lshl_add_u32 v5, v6, 4, v5")
e("s_mul_i32 s57, s4, 43008")
e("v_add_u32 v5, s57, v5")
e("v_xor_b32 v21, 64, v5")
e("v_add_u32 v21, 7168, v21")
e("s_and_b32 s64, s7, 1")
e("s_cmp_eq_u32 s64, 0")
e("s_cselect_b64 vcc, -1, 0")
e("v_cndmask_b32 v20, v21, v5, vcc")
for q in range(11):
    e(f"s_add_u32 s64, s7, {4*q}")
    if q == 10:
        e(f"s_cmp_ge_u32 s64, 42")
        e("s_cbranch_scc1 L_xdone")
    e(f"s_lshr_b32 s67, s64, 1")
    e(f"s_mul_i32 s65, s67, 43691")
    e("s_lshr_b32 s65, s65, 17")
    e("s_mul_i32 s66, s65, 3")
    e(f"s_sub_u32 s66, s67, s66")
    e("s_mul_i32 s66, s66, 14336")
    e("s_lshl_b32 s65, s65, 7")
    e("s_add_u32 s65, s65, s66")
    e(f"s_lshl_b32 s66, s64, 10")
    e("s_mov_b32 m0, s66")
    e("s_nop 0")
    e("buffer_load_dwordx4 v20, s[16:19], s65 offen lds")
e("L_xdone:")
e("v_and_b32 v9, 7, v2")
e("v_and_b32 v10, 1, v4")
e("v_lshlrev_b32 v10, 1, v10")
e("v_xor_b32 v9, v9, v10")
e("v_lshlrev_b32 v9, 4, v9")
e("v_lshl_add_u32 v6, v8, 13, v9")
e("s_lshl_b32 s57, s5, 9")
e("s_lshl_b32 s64, s7, 7")
e("s_add_u32 s57, s57, s64")
e("v_add_u32 v6, s57, v6")
e("v_xor_b32 v7, 64, v6")
e("v_and_b32 v9, 7, v2")
e("v_lshlrev_b32 v10, 1, v4")
e("v_xor_b32 v9, v9, v10")
e("v_lshlrev_b32 v9, 4, v9")
e("v_lshl_add_u32 v8, v8, 9, v9")
e("v_add_u32 v8, s56, v8")
e("v_lshrrev_b32 v22, 3, v2")
e("v_and_b32 v9, 7, v2")
e("v_xor_b32 v9, v9, v4")
e("v_lshlrev_b32 v9, 4, v9")
e("v_lshl_add_u32 v22, v22, 9, v9")
e("v_add_u32 v22, s56, v22")
e("v_xor_b32 v23, 64, v22")
e(f"s_mul_i32 s57, s5, {256*896}")
e("s_mul_i32 s64, s7, 224")
e("s_add_u32 s57, s57, s64")
magic = (1 << 20) // 14 + 1
for i in range(7):
    e(f"v_add_u32 v17, {i*64}, v2")
    e(f"v_mul_u32_u24 v18, {magic}, v17")
    e("v_lshrrev_b32 v18, 20, v18")
    e("v_mul_u32_u24 v19, 14, v18")
    e("v_sub_u32 v19, v17, v19")
    e("v_mul_u32_u24 v18, 896, v18")
    e("v_lshlrev_b32 v19, 4, v19")
    e("v_add_u32 v18, v18, v19")
    e(f"v_add_u32 v{10+i}, s57, v18")
e("s_mul_i32 s60, s62, 524288")
e(f"s_mul_i32 s61, s63, {32*896}")
e("v_lshlrev_b32 v24, 4, v2")
e("v_add_u32 v24, s58, v24")
items = [('A', s, 4096) for s in range(14)] + [('K', 0, 6144), ('V', 0, 6144)] + [('D', u, 7168) for u in range(8)]
pos = 0; place = []
for (k, i, sz) in items:
    if pos + sz > RSZ: pos = 0
    place.append((pos, pos + sz)); pos += sz
assert place[14][0] == 0 and place[15][0] == 6144 and place[16][0] == 12288
released = [False] * len(items)
nxt = [0]; vmq = []
REGD = 2
def dreg(u): return 32 + (u - REGD) * 28
loaded = {}
def adv_d():
    e(f"s_add_u32 s61, s61, {32*896}")
    e(f"s_cmp_eq_u32 s61, {8*32*896}")
    e("s_cselect_b32 s61, 0, s61")
regq = [i for i, it in enumerate(items) if it[0] == 'D' and it[1] >= REGD]
dmaq = [i for i, it in enumerate(items) if i not in regq]
def issue_reg(n):
    for _ in range(n):
        if not regq: return
        i = regq.pop(0); k, idx, sz = items[i]
        e(f"s_mov_b32 s59, {idx*32*896}")
        e("s_add_u32 s59, s59, s61")
        e(f"s_cmp_ge_u32 s59, {8*32*896}")
        e(f"s_cselect_b32 s64, {8*32*896}, 0")
        e("s_sub_u32 s59, s59, s64")
        for q in range(7):
            r = dreg(idx) + q*4
            e(f"buffer_load_dwordx4 v[{r}:{r+3}], v{10+q}, s[12:15], s59 offen")
            vmq.append(i)
        loaded[i] = True
def try_issue(limit=99):
    cnt = 0
    while dmaq and cnt < limit:
        i = dmaq[0]; a, b_ = place[i]
        k, idx, sz = items[i]
        if not all(released[j] or place[j][1] <= a or place[j][0] >= b_ for j in range(i)): break
        cnt += 1
        if k == 'D':
            e(f"s_mov_b32 s59, {idx*32*896}")
            e("s_add_u32 s59, s59, s61")
            e(f"s_cmp_ge_u32 s59, {8*32*896}")
            e(f"s_cselect_b32 s64, {8*32*896}, 0")
            e("s_sub_u32 s65, s59, s64")
        for q in range(sz // 1024):
            e(f"s_add_u32 m0, s58, {a + q*1024}")
            if k == 'A':
                e(f"s_add_u32 s59, s60, {q*8*8192}")
                e(f"buffer_load_dwordx4 v{6 + (q&1)}, s[8:11], s59 offen lds")
            elif k == 'K':
                e(f"s_mov_b32 s59, {q*8*512}")
                e(f"buffer_load_dwordx4 v{22 + (q&1)}, s[20:23], s59 offen lds")
            elif k == 'V':
                e(f"s_mov_b32 s59, {q*8*512}")
                e(f"buffer_load_dwordx4 v8, s[24:27], s59 offen lds")
            else:
                e(f"s_nop 0")
                e(f"buffer_load_dwordx4 v{10+q}, s[12:15], s65 offen lds")
            vmq.append(i)
        if k == 'A':
            e("s_add_u32 s60, s60, 262144")
            e(f"s_cmp_eq_u32 s60, {14*262144}")
            e("s_cselect_b32 s60, 0, s60")
        dmaq.pop(0)
def wait_item(i):
    global vmq
    if i not in vmq: return
    idx = max(n for n, t in enumerate(vmq) if t == i)
    e(f"s_waitcnt vmcnt({len(vmq)-1-idx})")
    vmq = vmq[idx+1:]
NB = 25
RAMP = [2, 2, 2, 2]
REGSTART = 5
need = {k: k for k in range(14)}
need[14] = 14
need[16] = 15
for u in range(8): need[17+u] = 16+u
free_after = {k: [k-1] for k in range(1, 15)}
free_after[15] = [14]
free_after[17] = [15]
for u in range(1, 8): free_after[17+u] = [16+u-1]
written = set()
def stage_writes(k):
    wrote = False
    for i, (kk, idx, sz) in enumerate(items):
        if kk == 'D' and idx >= REGD and i not in written and i in loaded:
            a, b_ = place[i]
            if not all(released[j] or place[j][1] <= a or place[j][0] >= b_ for j in range(i)): break
            wait_item(i)
            for q in range(7):
                r = dreg(idx) + q*4
                e(f"ds_write_b128 v24, v[{r}:{r+3}] offset:{a + q*1024}")
            written.add(i); wrote = True
    if wrote: e("s_waitcnt lgkmcnt(0)")
for k in range(NB):
    try_issue(RAMP[k] if k < len(RAMP) else 99)
    if k >= REGSTART: issue_reg(1)
    stage_writes(k)
    if k in need:
        i = need[k]
        if items[i][0] == 'D' and items[i][1] >= REGD: assert i in written, (k, i)
        else: wait_item(i)
    e("s_barrier")
    for i in free_after.get(k, []): released[i] = True
assert not dmaq and not regq
e("L_end:")
e("s_endpgm")
e(""".section .rodata,"a"
.p2align 6
.amdhsa_kernel standalone__gqa_block_cached__near_ridge_kernel
  .amdhsa_next_free_vgpr 256
  .amdhsa_next_free_sgpr 96
  .amdhsa_accum_offset 256
  .amdhsa_group_segment_fixed_size 0
  .amdhsa_kernarg_size 64
  .amdhsa_user_sgpr_count 2
  .amdhsa_user_sgpr_kernarg_segment_ptr 1
  .amdhsa_system_sgpr_workgroup_id_x 1
.end_amdhsa_kernel""")
open(OUT, 'w').write("\n".join(L) + "\n")
print("lds", LDS, "lines", len(L))
```

```python
import sys
OUT = sys.argv[1]
opts = sys.argv[2:]
STAMPS = 'stamps' in opts
BF16P = 'bf16p' in opts
TWOK = 'twok' in opts
L = []
def e(s): L.append(s)
nst = [0]
def stamp():
    if not STAMPS: return
    i = nst[0]; nst[0] += 1
    e(f"s_memrealtime s[{70+2*i}:{71+2*i}]")
    e("s_waitcnt lgkmcnt(0)")

XB = 0; SB = 0; PB = 36864; OB = 0
RING = 43008; RSZ = 28672
LDS = RING + 4 * RSZ
PSZ = 45056 if BF16P else 86016
KN = "standalone__gqa_block_cached__near_ridge_kernel"
if TWOK:
    e(f"; @launch kernel={KN} grid=(256,1,1) block=(512,1,1) lds={LDS}")
    e(f"; @launch kernel=gqa_reduce_kernel grid=(256,1,1) block=(256,1,1) lds=0")
else:
    e(f"; @launch grid=(256,1,1) block=(512,1,1) lds={LDS}")
e(f""".amdgcn_target "amdgcn-amd-amdhsa--gfx950"
.text
.globl {KN}
.p2align 8
.type {KN},@function
{KN}:""")
def srd(s, p, n):
    e(f"s_mov_b32 s{s}, s{p}"); e(f"s_mov_b32 s{s+1}, s{p+1}"); e(f"s_mov_b32 s{s+2}, {n}"); e(f"s_mov_b32 s{s+3}, 0x20000")
def prologue_ids(endlabel):
    e("s_cmp_ge_u32 s2, 256")
    e(f"s_cbranch_scc1 {endlabel}")
    e("s_load_dwordx8 s[40:47], s[0:1], 0")
    e("s_load_dwordx8 s[48:55], s[0:1], 32")
    e("s_and_b32 s3, s2, 7")
    e("s_lshr_b32 s4, s2, 3")
    e("s_and_b32 s4, s4, 15")
    e("s_lshr_b32 s5, s2, 7")
    e("s_lshl_b32 s6, s3, 1")
    e("s_add_u32 s5, s5, s6")
prologue_ids("L_end")
if STAMPS: e("s_memrealtime s[92:93]")
e("v_lshrrev_b32 v1, 6, v0")
e("v_and_b32 v2, 63, v0")
e("v_and_b32 v3, 15, v2")
e("v_readfirstlane_b32 s6, v1")
e("v_lshrrev_b32 v4, 4, v2")
e("s_and_b32 s7, s6, 3")
e(f"s_mul_i32 s58, s7, {RSZ}")
e(f"s_add_u32 s58, s58, {RING}")
e("s_lshl_b32 s56, s4, 3")
e("s_add_u32 s56, s56, s3")
e("s_mul_i32 s56, s56, 24576")
e("s_lshl_b32 s57, s7, 7")
e("s_add_u32 s56, s56, s57")
e("s_cmp_ge_u32 s4, 7")
e("s_cselect_b32 s61, 7, 0")
e("s_sub_u32 s62, s4, s61")
e("s_cmp_ge_u32 s62, 7")
e("s_cselect_b32 s61, 7, 0")
e("s_sub_u32 s62, s62, s61")
e("s_and_b32 s63, s4, 7")
e("s_waitcnt lgkmcnt(0)")
e("s_cmp_ge_u32 s6, 4")
e("s_cbranch_scc1 L_loader")

e("v_lshrrev_b32 v17, 2, v3")
e("v_and_b32 v18, 3, v3")
e("v_lshlrev_b32 v18, 3, v18")
e("v_add_u32 v18, s58, v18")
e("v_lshrrev_b32 v19, 1, v17")
e("v_and_b32 v24, 1, v4")
e("v_lshl_add_u32 v19, v24, 1, v19")
e("v_lshl_add_u32 v24, v4, 3, v17")
e("v_lshl_add_u32 v24, v24, 7, v18")
for j in range(4):
    e(f"v_xor_b32 v25, {j}, v19")
    e(f"v_lshl_add_u32 v{20+j}, v25, 5, v24")
e("v_lshrrev_b32 v19, 1, v17")
e("v_lshl_add_u32 v19, v4, 1, v19")
e("v_and_b32 v19, 3, v19")
e("v_lshl_add_u32 v28, v4, 2, v17")
e("v_lshl_add_u32 v29, v28, 7, v18")
for t in range(4):
    e(f"v_xor_b32 v30, {t}, v19")
    e(f"v_lshl_add_u32 v{24+t}, v30, 5, v29")
e("v_mul_u32_u24 v28, 224, v28")
e("v_add_u32 v28, v28, v18")
e("v_lshrrev_b32 v10, 1, v3")
e("v_xor_b32 v10, v10, v4")
e("v_lshlrev_b32 v10, 4, v10")
e("v_lshl_add_u32 v10, v3, 7, v10")
e("v_xor_b32 v11, 64, v10")
e("v_add_u32 v16, s58, v10")
e("v_xor_b32 v17, 64, v16")
e("v_lshlrev_b32 v29, 4, v2")
e("v_lshlrev_b32 v30, 3, v2")
ACC = 32; XF = 80; WF = 104
for i in range(48): e(f"v_mov_b32 v{ACC+i}, 0")
e("s_mov_b32 s59, 0")
e("s_mul_i32 s60, s62, 6144")
def stageA(buf, par, do_mfma):
    rd = []
    for j in range(4):
        e(f"v_add_u32 v{12+j}, s59, v{20+j}")
    e(f"v_add_u32 v18, s60, v{10+par}")
    for mt in range(3):
        r = XF + buf*12 + mt*4
        rd.append(f"ds_read_b128 v[{r}:{r+3}], v18 offset:{mt*2048}")
    for j in range(4):
        for q2 in range(2):
            r = WF + buf*16 + j*4 + q2*2
            rd.append(f"ds_read_b64_tr_b16 v[{r}:{r+1}], v{12+j} offset:{q2*512}")
    mf = []
    if do_mfma: mf = mfmaA(buf ^ 1)
    n = max(len(rd), len(mf))
    for i in range(n):
        if i < len(mf): e(mf[i])
        if i < len(rd): e(rd[i])
    e("s_add_u32 s59, s59, 4096")
    e(f"s_cmp_eq_u32 s59, {RSZ}")
    e("s_cselect_b32 s59, 0, s59")
    if par == 1:
        e("s_add_u32 s60, s60, 6144")
        e("s_cmp_eq_u32 s60, 43008")
        e("s_cselect_b32 s60, 0, s60")
def mfmaA(buf):
    o = []
    for j in range(4):
        for mt in range(3):
            acc = ACC + (j*3+mt)*4
            wa = WF + buf*16 + j*4
            xb = XF + buf*12 + mt*4
            o.append(f"v_mfma_f32_16x16x32_bf16 v[{acc}:{acc+3}], v[{wa}:{wa+3}], v[{xb}:{xb+3}], v[{acc}:{acc+3}]")
    return o
e("s_barrier")
stamp()
stageA(0, 0, False)
e("s_waitcnt lgkmcnt(0)")
e("s_mov_b32 s64, 6")
e("L_loopA:")
e("s_barrier")
stageA(1, 1, True)
e("s_waitcnt lgkmcnt(0)")
e("s_barrier")
stageA(0, 0, True)
e("s_sub_u32 s64, s64, 1")
e("s_waitcnt lgkmcnt(0)")
e("s_cmp_lg_u32 s64, 0")
e("s_cbranch_scc1 L_loopA")
e("s_barrier")
stageA(1, 1, True)
e("s_waitcnt lgkmcnt(0)")
e("s_barrier")
KF = 136
for kt in range(3):
    for u in range(2):
        r = KF + (kt*2+u)*4
        e(f"ds_read_b128 v[{r}:{r+3}], v{16+u} offset:{kt*2048}")
for m in mfmaA(1): e(m)
e("s_nop 7")
stamp()
e("s_nop 1")
QP = 160
for u in range(2):
    for mt in range(3):
        for hf in range(2):
            acc = ACC + ((2*u+hf)*3+mt)*4
            d = QP + (u*3+mt)*4 + hf*2
            e(f"v_cvt_pk_bf16_f32 v{d}, v{acc}, v{acc+1}")
            e(f"v_cvt_pk_bf16_f32 v{d+1}, v{acc+2}, v{acc+3}")
SA = 184
e("s_nop 1")
for n in range(6):
    for i in range(2):
        e(f"v_permlane32_swap_b32 v{QP+n*4+i}, v{QP+n*4+2+i}")
for n in range(6):
    for i in range(2):
        e(f"v_permlane16_swap_b32 v{QP+n*4+i}, v{QP+n*4+2+i}")
e("s_mul_i32 s64, s7, 9216")
e("v_add_u32 v31, s64, v29")
e("s_waitcnt lgkmcnt(0)")
for u in range(2):
    for kt in range(3):
        for mt in range(3):
            acc = SA + (kt*3+mt)*4
            ka = KF + (kt*2+u)*4
            qb = QP + (u*3+mt)*4
            c = "0" if u == 0 else f"v[{acc}:{acc+3}]"
            e(f"v_mfma_f32_16x16x32_bf16 v[{acc}:{acc+3}], v[{ka}:{ka+3}], v[{qb}:{qb+3}], {c}")
for t in range(9):
    if t == 0: e("s_nop 1")
    e(f"ds_write_b128 v31, v[{SA+t*4}:{SA+t*4+3}] offset:{SB + t*1024}")
e("s_waitcnt lgkmcnt(0)")
e("s_barrier")
e("s_cmp_ge_u32 s7, 3")
e("s_cbranch_scc1 L_smdone")
e("s_lshl_b32 s64, s7, 10")
e("v_add_u32 v31, s64, v29")
T = 32
for w in range(4):
    for kt in range(3):
        r = T + (w*3+kt)*4
        e(f"ds_read_b128 v[{r}:{r+3}], v31 offset:{SB + (w*9 + kt*3)*1024}")
e("s_mov_b32 s64, 0x3db8aa3b")
e("s_waitcnt lgkmcnt(0)")
for k in (12, 24, 36):
    for i in range(12):
        e(f"v_add_f32 v{T+i}, v{T+i}, v{T+k+i}")
for i in range(6):
    e(f"v_cvt_pk_bf16_f32 v{T+12+i}, v{T+2*i}, v{T+2*i+1}")
for i in range(6):
    e(f"v_lshlrev_b32 v{T+2*i}, 16, v{T+12+i}")
    e(f"v_and_b32 v{T+2*i+1}, 0xffff0000, v{T+12+i}")
M = T + 24
e(f"v_max3_f32 v{M}, v{T}, v{T+1}, v{T+2}")
e(f"v_max3_f32 v{M+1}, v{T+3}, v{T+4}, v{T+5}")
e(f"v_max3_f32 v{M+2}, v{T+6}, v{T+7}, v{T+8}")
e(f"v_max3_f32 v{M+3}, v{T+9}, v{T+10}, v{T+11}")
e(f"v_max3_f32 v{M}, v{M}, v{M+1}, v{M+2}")
e(f"v_max_f32 v{M}, v{M}, v{M+3}")
def xreduce(op, R, Tm):
    e(f"v_mov_b32 v{Tm}, v{R}")
    e("s_nop 1")
    e(f"v_permlane32_swap_b32 v{R}, v{Tm}")
    e(f"v_{op}_f32 v{R}, v{R}, v{Tm}")
    e(f"v_mov_b32 v{Tm}, v{R}")
    e("s_nop 1")
    e(f"v_permlane16_swap_b32 v{R}, v{Tm}")
    e(f"v_{op}_f32 v{R}, v{R}, v{Tm}")
xreduce('max', M, M+1)
e(f"v_mul_f32 v{M}, s64, v{M}")
for i in range(12):
    e(f"v_fma_f32 v{T+i}, v{T+i}, s64, -v{M}")
for i in range(12):
    e(f"v_exp_f32 v{T+i}, v{T+i}")
e("s_nop 0")
S_ = M + 2
e(f"v_add_f32 v{S_}, v{T}, v{T+1}")
for i in range(2, 12):
    e(f"v_add_f32 v{S_}, v{S_}, v{T+i}")
xreduce('add', S_, S_+1)
e(f"v_rcp_f32 v{S_}, v{S_}")
e("s_mul_i32 s64, s7, 1536")
for i in range(12):
    e(f"v_mul_f32 v{T+i}, v{T+i}, v{S_}")
for i in range(6):
    e(f"v_cvt_pk_bf16_f32 v{T+12+i}, v{T+2*i}, v{T+2*i+1}")
e("v_add_u32 v31, s64, v29")
e(f"ds_write_b128 v31, v[{T+12}:{T+15}] offset:{PB}")
e("v_add_u32 v31, s64, v30")
e(f"ds_write_b64 v31, v[{T+16}:{T+17}] offset:{PB+1024}")
e("s_waitcnt lgkmcnt(0)")
e("L_smdone:")
e("s_barrier")
PF = 32; VF = 52; VPOS = 6144
for mt in range(3):
    e(f"ds_read_b128 v[{PF+mt*6}:{PF+mt*6+3}], v29 offset:{PB + mt*1536}")
    e(f"ds_read_b64 v[{PF+mt*6+4}:{PF+mt*6+5}], v30 offset:{PB + mt*1536 + 1024}")
for t in range(4):
    for kk in range(3):
        r = VF + t*6 + kk*2
        e(f"ds_read_b64_tr_b16 v[{r}:{r+1}], v{24+t} offset:{VPOS + kk*2048}")
e("s_mul_i32 s64, s7, 6144")
e("v_add_u32 v31, s64, v29")
e("s_waitcnt lgkmcnt(0)")
OA = 80
for t in range(4):
    for mt in range(3):
        acc = OA + (t*3+mt)*4
        e(f"v_mfma_f32_16x16x32_bf16 v[{acc}:{acc+3}], v[{VF+t*6}:{VF+t*6+3}], v[{PF+mt*6}:{PF+mt*6+3}], 0")
for t in range(4):
    for mt in range(3):
        acc = OA + (t*3+mt)*4
        e(f"v_mfma_f32_16x16x16_bf16 v[{acc}:{acc+3}], v[{VF+t*6+4}:{VF+t*6+5}], v[{PF+mt*6+4}:{PF+mt*6+5}], v[{acc}:{acc+3}]")
OP = 128
for u in range(2):
    for mt in range(3):
        for hf in range(2):
            acc = OA + ((2*u+hf)*3+mt)*4
            d = OP + (u*3+mt)*4 + hf*2
            if u == 0 and mt == 0 and hf == 0: e("s_nop 1")
            e(f"v_cvt_pk_bf16_f32 v{d}, v{acc}, v{acc+1}")
            e(f"v_cvt_pk_bf16_f32 v{d+1}, v{acc+2}, v{acc+3}")
for i in range(6):
    e(f"ds_write_b128 v31, v[{OP+i*4}:{OP+i*4+3}] offset:{OB + i*1024}")
e("s_waitcnt lgkmcnt(0)")
e("s_barrier")
stamp()
DACC = 32; OF = 116; WO = 140
e("s_mov_b32 s59, 12288")
e("s_mul_i32 s60, s63, 3072")
def stageD(buf, mode):
    rd = []
    e(f"v_add_u32 v13, s59, v28")
    e(f"v_add_u32 v12, s60, v29")
    for mt in range(3):
        r = OF + buf*12 + mt*4
        rd.append(f"ds_read_b128 v[{r}:{r+3}], v12 offset:{OB + mt*1024}")
    for j in range(7):
        for q2 in range(2):
            r = WO + buf*28 + j*4 + q2*2
            rd.append(f"ds_read_b64_tr_b16 v[{r}:{r+1}], v13 offset:{j*32 + q2*3584}")
    mf = mfmaD(buf ^ 1, mode == 1) if mode else []
    n = max(len(rd), len(mf))
    for i in range(n):
        if i < len(mf): e(mf[i])
        if i < len(rd): e(rd[i])
    e("s_add_u32 s60, s60, 3072")
    e("s_cmp_eq_u32 s60, 24576")
    e("s_cselect_b32 s60, 0, s60")
    e("s_add_u32 s59, s59, 7168")
    e(f"s_cmp_gt_u32 s59, {RSZ-7168}")
    e("s_cselect_b32 s59, 0, s59")
def mfmaD(buf, first):
    o = []
    for j in range(7):
        for mt in range(3):
            acc = DACC + (j*3+mt)*4
            wa = WO + buf*28 + j*4
            ob = OF + buf*12 + mt*4
            c = "0" if first else f"v[{acc}:{acc+3}]"
            o.append(f"v_mfma_f32_16x16x32_bf16 v[{acc}:{acc+3}], v[{wa}:{wa+3}], v[{ob}:{ob+3}], {c}")
    return o
stageD(0, 0)
e("s_waitcnt lgkmcnt(0)")
e("s_barrier")
stageD(1, 1)
e("s_waitcnt lgkmcnt(0)")
e("s_mov_b32 s64, 3")
e("L_loopD:")
e("s_barrier")
stageD(0, 2)
e("s_waitcnt lgkmcnt(0)")
e("s_barrier")
stageD(1, 2)
e("s_sub_u32 s64, s64, 1")
e("s_waitcnt lgkmcnt(0)")
e("s_cmp_lg_u32 s64, 0")
e("s_cbranch_scc1 L_loopD")
for m in mfmaD(1, False): e(m)
e("s_lshl_b32 s59, s4, 4")
e("s_add_u32 s59, s59, s5")
e(f"s_mul_i32 s59, s59, {PSZ}")
e(f"s_mul_i32 s64, s7, {PSZ//4}")
e("s_add_u32 s59, s59, s64")
e("v_add_u32 v31, s59, v29")
srd(28, 54, 256*PSZ)
e("s_nop 3")
stamp()
SC = "" if TWOK else " sc1"
if BF16P:
    for t in range(21):
        d = 120 + t*2
        e(f"v_cvt_pk_bf16_f32 v{d}, v{DACC+t*4}, v{DACC+t*4+1}")
        e(f"v_cvt_pk_bf16_f32 v{d+1}, v{DACC+t*4+2}, v{DACC+t*4+3}")
        if t % 2 == 1:
            p = t // 2
            if p % 4 == 0 and p > 0: e("v_add_u32 v31, 4096, v31")
            e(f"buffer_store_dwordx4 v[{d-2}:{d+1}], v31, s[28:31], 0 offen offset:{(p%4)*1024}{SC}")
    e(f"buffer_store_dwordx2 v[{120+40}:{120+41}], v31, s[28:31], 0 offen offset:{(10%4)*1024}{SC}")
else:
    for t in range(21):
        if t % 4 == 0 and t > 0:
            e("v_add_u32 v31, 4096, v31")
        e(f"buffer_store_dwordx4 v[{DACC+t*4}:{DACC+t*4+3}], v31, s[28:31], 0 offen offset:{(t%4)*1024}{SC}")

def stamps_out(endlabel):
    e("s_waitcnt vmcnt(0)")
    e("s_memrealtime s[94:95]")
    e("s_waitcnt lgkmcnt(0)")
    e("v_cmp_eq_u32 vcc, 0, v0")
    e("s_and_saveexec_b64 s[30:31], vcc")
    e(f"s_cbranch_execz {endlabel}")
    e("s_lshl_b32 s3, s2, 4")
    e("s_add_u32 s3, s3, 0xC800000")
    e("v_mov_b32 v1, s3")
    e("v_mov_b32 v4, s92"); e("v_mov_b32 v5, s93"); e("v_mov_b32 v6, s94"); e("v_mov_b32 v7, s95")
    e("global_store_dwordx4 v1, v[4:7], s[54:55]")
    for i in range(0, nst[0], 2):
        e("v_add_u32 v1, 0x10000, v1")
        e(f"v_mov_b32 v4, s{70+2*i}"); e(f"v_mov_b32 v5, s{71+2*i}"); e(f"v_mov_b32 v6, s{72+2*i}"); e(f"v_mov_b32 v7, s{73+2*i}")
        e("global_store_dwordx4 v1, v[4:7], s[54:55]")

def reduce_code(tidreg, nwaves_active):
    srd(32, 50, 16*48*448*2)
    e(f"s_mul_i32 s64, s4, {16*PSZ}")
    if BF16P:
        e("s_mul_i32 s59, s5, 176")
        e(f"v_add_u32 v32, s59, v{tidreg}")
        e(f"v_cmp_gt_u32 vcc, 176, v{tidreg}")
        e("s_and_saveexec_b64 s[66:67], vcc")
        e("s_cbranch_execz L_rdone")
        e("v_lshlrev_b32 v36, 4, v32")
        e("v_add_u32 v36, s64, v36")
        e("s_mov_b32 s65, 0")
        for hh in range(16):
            e(f"buffer_load_dwordx4 v[{40+hh*4}:{43+hh*4}], v36, s[28:31], s65 offen{SC}")
            e(f"s_add_u32 s65, s65, {PSZ}")
        e("v_lshrrev_b32 v33, 6, v32")
        e("v_mul_u32_u24 v34, 5958, v33")
        e("v_lshrrev_b32 v34, 16, v34")
        e("v_mul_u32_u24 v35, 11, v34")
        e("v_sub_u32 v35, v33, v35")
        e("v_lshlrev_b32 v35, 1, v35")
        e("v_mul_u32_u24 v37, 21, v34")
        e("v_add_u32 v37, v37, v35")
        def outaddr(Treg, dst, tmp):
            e(f"v_mul_u32_u24 v{tmp}, 43691, v{Treg}")
            e(f"v_lshrrev_b32 v{tmp}, 17, v{tmp}")
            e(f"v_mul_u32_u24 v{dst}, 3, v{tmp}")
            e(f"v_sub_u32 v{dst}, v{Treg}, v{dst}")
            e(f"v_and_b32 v39, 15, v32")
            e(f"v_lshl_add_u32 v{dst}, v{dst}, 4, v39")
            e(f"v_bfe_u32 v39, v32, 4, 2")
            e(f"v_lshlrev_b32 v39, 2, v39")
            e(f"v_lshl_add_u32 v{tmp}, v{tmp}, 4, v39")
            e(f"s_mul_i32 s65, s4, 48")
            e(f"v_add_u32 v{dst}, s65, v{dst}")
            e(f"v_mul_u32_u24 v{dst}, 448, v{dst}")
            e(f"v_add_lshl_u32 v{dst}, v{dst}, v{tmp}, 1")
        outaddr(37, 104, 105)
        e("v_add_u32 v38, 1, v37")
        outaddr(38, 106, 107)
        e("s_waitcnt vmcnt(0)")
        A = 110
        for hh in range(16):
            for c in range(4):
                src = 40 + hh*4 + c
                if hh == 0:
                    e(f"v_lshlrev_b32 v{A+2*c}, 16, v{src}")
                    e(f"v_and_b32 v{A+2*c+1}, 0xffff0000, v{src}")
                else:
                    e(f"v_lshlrev_b32 v{A+8}, 16, v{src}")
                    e(f"v_and_b32 v{A+9}, 0xffff0000, v{src}")
                    e(f"v_add_f32 v{A+2*c}, v{A+2*c}, v{A+8}")
                    e(f"v_add_f32 v{A+2*c+1}, v{A+2*c+1}, v{A+9}")
        for c in range(4):
            e(f"v_cvt_pk_bf16_f32 v{A+10+c}, v{A+2*c}, v{A+2*c+1}")
        e(f"buffer_store_dwordx2 v[{A+10}:{A+11}], v104, s[32:35], 0 offen")
        e("v_cmp_gt_u32 vcc, 20, v35")
        e("s_and_b64 exec, exec, vcc")
        e("s_cbranch_execz L_rdone")
        e(f"buffer_store_dwordx2 v[{A+12}:{A+13}], v106, s[32:35], 0 offen")
        e("L_rdone:")
        e("s_mov_b64 exec, s[66:67]")
    else:
        e("s_mul_i32 s59, s5, 336")
        e(f"v_add_u32 v32, s59, v{tidreg}")
        def reduce_item(itemreg, base):
            e(f"v_lshlrev_b32 v{base}, 4, v{itemreg}")
            e(f"v_add_u32 v{base}, s64, v{base}")
            e("s_mov_b32 s65, 0")
            for hh in range(16):
                e(f"buffer_load_dwordx4 v[{base+4+hh*4}:{base+7+hh*4}], v{base}, s[28:31], s65 offen{SC}")
                e(f"s_add_u32 s65, s65, {PSZ}")
        def finish_item(itemreg, base):
            for hh in range(1, 16):
                for c in range(4):
                    e(f"v_add_f32 v{base+4+c}, v{base+4+c}, v{base+4+hh*4+c}")
            e(f"v_cvt_pk_bf16_f32 v{base+4}, v{base+4}, v{base+5}")
            e(f"v_cvt_pk_bf16_f32 v{base+5}, v{base+6}, v{base+7}")
            e(f"v_lshrrev_b32 v{base+8}, 6, v{itemreg}")
            e(f"v_mul_u32_u24 v{base+9}, 43691, v{base+8}")
            e(f"v_lshrrev_b32 v{base+9}, 17, v{base+9}")
            e(f"v_mul_u32_u24 v{base+10}, 3, v{base+9}")
            e(f"v_sub_u32 v{base+10}, v{base+8}, v{base+10}")
            e(f"v_and_b32 v{base+11}, 15, v{itemreg}")
            e(f"v_lshl_add_u32 v{base+10}, v{base+10}, 4, v{base+11}")
            e(f"v_bfe_u32 v{base+11}, v{itemreg}, 4, 2")
            e(f"v_lshlrev_b32 v{base+11}, 2, v{base+11}")
            e(f"v_lshl_add_u32 v{base+9}, v{base+9}, 4, v{base+11}")
            e(f"s_mul_i32 s65, s4, 48")
            e(f"v_add_u32 v{base+10}, s65, v{base+10}")
            e(f"v_mul_u32_u24 v{base+10}, 448, v{base+10}")
            e(f"v_add_lshl_u32 v{base+10}, v{base+10}, v{base+9}, 1")
            e(f"buffer_store_dwordx2 v[{base+4}:{base+5}], v{base+10}, s[32:35], 0 offen")
        reduce_item(32, 36)
        e("v_add_u32 v33, 256, v32")
        e(f"v_cmp_gt_u32 vcc, 80, v{tidreg}")
        e("s_and_saveexec_b64 s[66:67], vcc")
        e("s_cbranch_execz L_r2")
        reduce_item(33, 136)
        e("s_waitcnt vmcnt(0)")
        finish_item(33, 136)
        e("L_r2:")
        e("s_mov_b64 exec, s[66:67]")
        e("s_waitcnt vmcnt(0)")
        finish_item(32, 36)

if TWOK:
    if STAMPS: stamps_out("L_end")
    e("s_endpgm")
else:
    e("s_waitcnt vmcnt(0)")
    e("s_barrier")
    stamp()
    e("s_cmp_lg_u32 s7, 0")
    e("s_cbranch_scc1 L_waitdone")
    e("s_lshl_b32 s59, s4, 4")
    e("v_mov_b32 v32, s59")
    e("v_add_u32 v35, s5, v32")
    e("v_mov_b32 v33, 1")
    e("v_cmp_eq_u32 vcc, 0, v2")
    e("s_and_saveexec_b64 s[64:65], vcc")
    e("global_store_byte v35, v33, s[52:53] sc1")
    e("L_poll:")
    e("global_load_dwordx4 v[36:39], v32, s[52:53] sc1")
    e("s_waitcnt vmcnt(0)")
    e("v_and_b32 v36, v36, v37")
    e("v_and_b32 v38, v38, v39")
    e("v_and_b32 v36, v36, v38")
    e("s_nop 0")
    e("v_readfirstlane_b32 s59, v36")
    e("s_cmp_eq_u32 s59, 0x01010101")
    e("s_cbranch_scc1 L_polldone")
    e("s_sleep 1")
    e("s_branch L_poll")
    e("L_polldone:")
    e("s_mov_b64 exec, s[64:65]")
    e("L_waitdone:")
    e("s_barrier")
    stamp()
    reduce_code(0, 4)
    if STAMPS: stamps_out("L_end")
    e("s_endpgm")

e("L_loader:")
srd(16, 40, 16*48*448*2)
e("v_lshrrev_b32 v8, 3, v2")
e("v_mul_u32_u24 v5, 896, v8")
e("v_and_b32 v6, 7, v2")
e("v_xor_b32 v6, v6, v4")
e("v_lshl_add_u32 v5, v6, 4, v5")
e("s_mul_i32 s57, s4, 43008")
e("v_add_u32 v5, s57, v5")
e("v_xor_b32 v21, 64, v5")
e("v_add_u32 v21, 7168, v21")
e("s_and_b32 s64, s7, 1")
e("s_cmp_eq_u32 s64, 0")
e("s_cselect_b64 vcc, -1, 0")
e("v_cndmask_b32 v20, v21, v5, vcc")
srd(8, 46, 448*4096*2)
e("v_and_b32 v9, 7, v2")
e("v_and_b32 v10, 1, v4")
e("v_lshlrev_b32 v10, 1, v10")
e("v_xor_b32 v9, v9, v10")
e("v_lshlrev_b32 v9, 4, v9")
e("v_lshl_add_u32 v6, v8, 13, v9")
e("s_lshl_b32 s57, s5, 9")
e("s_lshl_b32 s64, s7, 7")
e("s_add_u32 s57, s57, s64")
e("v_add_u32 v6, s57, v6")
e("v_xor_b32 v7, 64, v6")
e("s_mul_i32 s60, s62, 524288")
for q in range(11):
    e(f"s_add_u32 s64, s7, {4*q}")
    if q == 10:
        e(f"s_cmp_ge_u32 s64, 42")
        e("s_cbranch_scc1 L_xdone")
    e(f"s_lshr_b32 s67, s64, 1")
    e(f"s_mul_i32 s65, s67, 43691")
    e("s_lshr_b32 s65, s65, 17")
    e("s_mul_i32 s66, s65, 3")
    e(f"s_sub_u32 s66, s67, s66")
    e("s_mul_i32 s66, s66, 14336")
    e("s_lshl_b32 s65, s65, 7")
    e("s_add_u32 s65, s65, s66")
    e(f"s_lshl_b32 s66, s64, 10")
    e("s_mov_b32 m0, s66")
    e("s_nop 0")
    e("buffer_load_dwordx4 v20, s[16:19], s65 offen lds")
e("L_xdone:")
late = []
def late_setup():
    srd(24, 44, 16*8*48*256*2)
    srd(20, 42, 16*8*48*256*2)
    srd(12, 48, 4096*448*2)
    e("v_lshrrev_b32 v8, 3, v2")
    e("v_and_b32 v9, 7, v2")
    e("v_lshlrev_b32 v10, 1, v4")
    e("v_xor_b32 v9, v9, v10")
    e("v_lshlrev_b32 v9, 4, v9")
    e("v_lshl_add_u32 v8, v8, 9, v9")
    e("v_add_u32 v8, s56, v8")
    e("v_lshrrev_b32 v22, 3, v2")
    e("v_and_b32 v9, 7, v2")
    e("v_xor_b32 v9, v9, v4")
    e("v_lshlrev_b32 v9, 4, v9")
    e("v_lshl_add_u32 v22, v22, 9, v9")
    e("v_add_u32 v22, s56, v22")
    e("v_xor_b32 v23, 64, v22")
    e(f"s_mul_i32 s57, s5, {256*896}")
    e("s_mul_i32 s64, s7, 224")
    e("s_add_u32 s57, s57, s64")
    magic = (1 << 20) // 14 + 1
    for i in range(7):
        e(f"v_add_u32 v17, {i*64}, v2")
        e(f"v_mul_u32_u24 v18, {magic}, v17")
        e("v_lshrrev_b32 v18, 20, v18")
        e("v_mul_u32_u24 v19, 14, v18")
        e("v_sub_u32 v19, v17, v19")
        e("v_mul_u32_u24 v18, 896, v18")
        e("v_lshlrev_b32 v19, 4, v19")
        e("v_add_u32 v18, v18, v19")
        e(f"v_add_u32 v{10+i}, s57, v18")
    e(f"s_mul_i32 s61, s63, {32*896}")
items = [('A', s, 4096) for s in range(14)] + [('K', 0, 6144), ('V', 0, 6144)] + [('D', u, 7168) for u in range(8)]
pos = 0; place = []
for (k, i, sz) in items:
    if pos + sz > RSZ: pos = 0
    place.append((pos, pos + sz)); pos += sz
assert place[14][0] == 0 and place[15][0] == 6144 and place[16][0] == 12288
released = [False] * len(items)
vmq = []; dmaq = list(range(len(items)))
def try_issue(limit=99):
    cnt = 0
    while dmaq and cnt < limit:
        i = dmaq[0]; a, b_ = place[i]
        k, idx, sz = items[i]
        if not all(released[j] or place[j][1] <= a or place[j][0] >= b_ for j in range(i)): break
        cnt += 1
        for q in range(sz // 1024):
            e(f"s_add_u32 m0, s58, {a + q*1024}")
            if k == 'A':
                e(f"s_add_u32 s59, s60, {q*8*8192}")
                e(f"buffer_load_dwordx4 v{6 + (q&1)}, s[8:11], s59 offen lds")
            elif k == 'K':
                e(f"s_mov_b32 s59, {q*8*512}")
                e(f"buffer_load_dwordx4 v{22 + (q&1)}, s[20:23], s59 offen lds")
            elif k == 'V':
                e(f"s_mov_b32 s59, {q*8*512}")
                e(f"buffer_load_dwordx4 v8, s[24:27], s59 offen lds")
            else:
                e(f"s_nop 0")
                e(f"buffer_load_dwordx4 v{10+q}, s[12:15], s61 offen lds")
            vmq.append(i)
        if k == 'A':
            e("s_add_u32 s60, s60, 262144")
            e(f"s_cmp_eq_u32 s60, {14*262144}")
            e("s_cselect_b32 s60, 0, s60")
        if k == 'D':
            e(f"s_add_u32 s61, s61, {32*896}")
            e(f"s_cmp_eq_u32 s61, {8*32*896}")
            e("s_cselect_b32 s61, 0, s61")
        dmaq.pop(0)
def wait_item(i):
    global vmq
    if i not in vmq: return
    idx = max(n for n, t in enumerate(vmq) if t == i)
    e(f"s_waitcnt vmcnt({len(vmq)-1-idx})")
    vmq = vmq[idx+1:]
NB = 25
RAMP = [2, 2, 2, 2]
need = {k: k for k in range(14)}
need[14] = 14
need[16] = 15
for u in range(8): need[17+u] = 16+u
free_after = {k: [k-1] for k in range(1, 15)}
free_after[15] = [14]
free_after[17] = [15]
for u in range(1, 8): free_after[17+u] = [16+u-1]
for k in range(NB):
    try_issue(RAMP[k] if k < len(RAMP) else 99)
    if k == 1: late_setup()
    if k in need: wait_item(need[k])
    e("s_barrier")
    for i in free_after.get(k, []): released[i] = True
assert not dmaq
e("L_end:")
e("s_endpgm")
def kd(name, vgpr):
    e(f""".section .rodata,"a"
.p2align 6
.amdhsa_kernel {name}
  .amdhsa_next_free_vgpr {vgpr}
  .amdhsa_next_free_sgpr 96
  .amdhsa_accum_offset {vgpr}
  .amdhsa_group_segment_fixed_size 0
  .amdhsa_kernarg_size 64
  .amdhsa_user_sgpr_count 2
  .amdhsa_user_sgpr_kernarg_segment_ptr 1
  .amdhsa_system_sgpr_workgroup_id_x 1
.end_amdhsa_kernel""")
if TWOK:
    e(""".text
.globl gqa_reduce_kernel
.p2align 8
.type gqa_reduce_kernel,@function
gqa_reduce_kernel:""")
    prologue_ids("L_end2")
    e("s_waitcnt lgkmcnt(0)")
    srd(28, 54, 256*PSZ)
    reduce_code(0, 4)
    e("L_end2:")
    e("s_endpgm")
kd(KN, 256)
if TWOK: kd("gqa_reduce_kernel", 208)
open(OUT, 'w').write("\n".join(L) + "\n")
print("lds", LDS, "lines", len(L), "stamps", nst[0])
```

```python
import sys
OUT = sys.argv[1]
opts = sys.argv[2:]
STAMPS = 'stamps' in opts
BF16P = 'bf16p' in opts
TWOK = 'twok' in opts
L = []
def e(s): L.append(s)
nst = [0]
def stamp():
    if not STAMPS: return
    i = nst[0]; nst[0] += 1
    e(f"s_memrealtime s[{70+2*i}:{71+2*i}]")
    e("s_waitcnt lgkmcnt(0)")

XB = 0; SB = 0; PB = 36864; OB = 0
RING = 43008; RSZ = 28672
LDS = RING + 4 * RSZ
PSZ = 45056 if BF16P else 86016
KN = "standalone__gqa_block_cached__near_ridge_kernel"
if TWOK:
    e(f"; @launch kernel={KN} grid=(256,1,1) block=(512,1,1) lds={LDS}")
    e(f"; @launch kernel=gqa_reduce_kernel grid=(256,1,1) block=(256,1,1) lds=0")
else:
    e(f"; @launch grid=(256,1,1) block=(512,1,1) lds={LDS}")
e(f""".amdgcn_target "amdgcn-amd-amdhsa--gfx950"
.text
.globl {KN}
.p2align 8
.type {KN},@function
{KN}:""")
def srd(s, p, n):
    e(f"s_mov_b32 s{s}, s{p}"); e(f"s_mov_b32 s{s+1}, s{p+1}"); e(f"s_mov_b32 s{s+2}, {n}"); e(f"s_mov_b32 s{s+3}, 0x20000")
def prologue_ids(endlabel):
    e("s_cmp_ge_u32 s2, 256")
    e(f"s_cbranch_scc1 {endlabel}")
    e("s_load_dwordx8 s[40:47], s[0:1], 0")
    e("s_load_dwordx8 s[48:55], s[0:1], 32")
    e("s_and_b32 s3, s2, 7")
    e("s_lshr_b32 s4, s2, 3")
    e("s_and_b32 s4, s4, 15")
    e("s_lshr_b32 s5, s2, 7")
    e("s_lshl_b32 s6, s3, 1")
    e("s_add_u32 s5, s5, s6")
prologue_ids("L_end")
if STAMPS: e("s_memrealtime s[92:93]")
if 'nops' in opts:
    for i in range(1024): e("s_nop 0")
e("v_lshrrev_b32 v1, 6, v0")
e("v_and_b32 v2, 63, v0")
e("v_and_b32 v3, 15, v2")
e("v_readfirstlane_b32 s6, v1")
e("v_lshrrev_b32 v4, 4, v2")
e("s_and_b32 s7, s6, 3")
e(f"s_mul_i32 s58, s7, {RSZ}")
e(f"s_add_u32 s58, s58, {RING}")
e("s_lshl_b32 s56, s4, 3")
e("s_add_u32 s56, s56, s3")
e("s_mul_i32 s56, s56, 24576")
e("s_lshl_b32 s57, s7, 7")
e("s_add_u32 s56, s56, s57")
e("s_cmp_ge_u32 s4, 7")
e("s_cselect_b32 s61, 7, 0")
e("s_sub_u32 s62, s4, s61")
e("s_cmp_ge_u32 s62, 7")
e("s_cselect_b32 s61, 7, 0")
e("s_sub_u32 s62, s62, s61")
e("s_and_b32 s63, s4, 7")
e("s_waitcnt lgkmcnt(0)")
e("s_cmp_ge_u32 s6, 4")
e("s_cbranch_scc1 L_loader")

e("v_lshrrev_b32 v17, 2, v3")
e("v_and_b32 v18, 3, v3")
e("v_lshlrev_b32 v18, 3, v18")
e("v_add_u32 v18, s58, v18")
e("v_lshrrev_b32 v19, 1, v17")
e("v_and_b32 v24, 1, v4")
e("v_lshl_add_u32 v19, v24, 1, v19")
e("v_lshl_add_u32 v24, v4, 3, v17")
e("v_lshl_add_u32 v24, v24, 7, v18")
for j in range(4):
    e(f"v_xor_b32 v25, {j}, v19")
    e(f"v_lshl_add_u32 v{20+j}, v25, 5, v24")
e("v_lshrrev_b32 v19, 1, v17")
e("v_lshl_add_u32 v19, v4, 1, v19")
e("v_and_b32 v19, 3, v19")
e("v_lshl_add_u32 v28, v4, 2, v17")
e("v_lshl_add_u32 v29, v28, 7, v18")
for t in range(4):
    e(f"v_xor_b32 v30, {t}, v19")
    e(f"v_lshl_add_u32 v{24+t}, v30, 5, v29")
e("v_mul_u32_u24 v28, 224, v28")
e("v_add_u32 v28, v28, v18")
e("v_lshrrev_b32 v10, 1, v3")
e("v_xor_b32 v10, v10, v4")
e("v_lshlrev_b32 v10, 4, v10")
e("v_lshl_add_u32 v10, v3, 7, v10")
e("v_xor_b32 v11, 64, v10")
e("v_add_u32 v16, s58, v10")
e("v_xor_b32 v17, 64, v16")
e("v_lshlrev_b32 v29, 4, v2")
e("v_lshlrev_b32 v30, 3, v2")
ACC = 32; XF = 80; WF = 104
for i in range(48): e(f"v_mov_b32 v{ACC+i}, 0")
e("s_mov_b32 s59, 0")
e("s_mul_i32 s60, s62, 6144")
def stageA(buf, par, do_mfma):
    rd = []
    for j in range(4):
        e(f"v_add_u32 v{12+j}, s59, v{20+j}")
    e(f"v_add_u32 v18, s60, v{10+par}")
    for mt in range(3):
        r = XF + buf*12 + mt*4
        rd.append(f"ds_read_b128 v[{r}:{r+3}], v18 offset:{mt*2048}")
    for j in range(4):
        for q2 in range(2):
            r = WF + buf*16 + j*4 + q2*2
            rd.append(f"ds_read_b64_tr_b16 v[{r}:{r+1}], v{12+j} offset:{q2*512}")
    mf = []
    if do_mfma: mf = mfmaA(buf ^ 1)
    n = max(len(rd), len(mf))
    for i in range(n):
        if i < len(mf): e(mf[i])
        if i < len(rd): e(rd[i])
    e("s_add_u32 s59, s59, 4096")
    e(f"s_cmp_eq_u32 s59, {RSZ}")
    e("s_cselect_b32 s59, 0, s59")
    if par == 1:
        e("s_add_u32 s60, s60, 6144")
        e("s_cmp_eq_u32 s60, 43008")
        e("s_cselect_b32 s60, 0, s60")
def mfmaA(buf):
    o = []
    for j in range(4):
        for mt in range(3):
            acc = ACC + (j*3+mt)*4
            wa = WF + buf*16 + j*4
            xb = XF + buf*12 + mt*4
            o.append(f"v_mfma_f32_16x16x32_bf16 v[{acc}:{acc+3}], v[{wa}:{wa+3}], v[{xb}:{xb+3}], v[{acc}:{acc+3}]")
    return o
e("s_barrier")
stamp()
stageA(0, 0, False)
e("s_waitcnt lgkmcnt(0)")
e("s_mov_b32 s64, 6")
e("L_loopA:")
e("s_barrier")
stageA(1, 1, True)
e("s_waitcnt lgkmcnt(0)")
e("s_barrier")
stageA(0, 0, True)
e("s_sub_u32 s64, s64, 1")
e("s_waitcnt lgkmcnt(0)")
e("s_cmp_lg_u32 s64, 0")
e("s_cbranch_scc1 L_loopA")
e("s_barrier")
stageA(1, 1, True)
e("s_waitcnt lgkmcnt(0)")
e("s_barrier")
KF = 136
for kt in range(3):
    for u in range(2):
        r = KF + (kt*2+u)*4
        e(f"ds_read_b128 v[{r}:{r+3}], v{16+u} offset:{kt*2048}")
for m in mfmaA(1): e(m)
e("s_nop 7")
stamp()
e("s_nop 1")
QP = 160
for u in range(2):
    for mt in range(3):
        for hf in range(2):
            acc = ACC + ((2*u+hf)*3+mt)*4
            d = QP + (u*3+mt)*4 + hf*2
            e(f"v_cvt_pk_bf16_f32 v{d}, v{acc}, v{acc+1}")
            e(f"v_cvt_pk_bf16_f32 v{d+1}, v{acc+2}, v{acc+3}")
SA = 184
e("s_nop 1")
for n in range(6):
    for i in range(2):
        e(f"v_permlane32_swap_b32 v{QP+n*4+i}, v{QP+n*4+2+i}")
for n in range(6):
    for i in range(2):
        e(f"v_permlane16_swap_b32 v{QP+n*4+i}, v{QP+n*4+2+i}")
e("s_mul_i32 s64, s7, 9216")
e("v_add_u32 v31, s64, v29")
e("s_waitcnt lgkmcnt(0)")
for u in range(2):
    for kt in range(3):
        for mt in range(3):
            acc = SA + (kt*3+mt)*4
            ka = KF + (kt*2+u)*4
            qb = QP + (u*3+mt)*4
            c = "0" if u == 0 else f"v[{acc}:{acc+3}]"
            e(f"v_mfma_f32_16x16x32_bf16 v[{acc}:{acc+3}], v[{ka}:{ka+3}], v[{qb}:{qb+3}], {c}")
for t in range(9):
    if t == 0: e("s_nop 1")
    e(f"ds_write_b128 v31, v[{SA+t*4}:{SA+t*4+3}] offset:{SB + t*1024}")
e("s_waitcnt lgkmcnt(0)")
if 'fine' in opts: stamp()
e("s_barrier")
if 'fine' in opts: stamp()
e("s_cmp_ge_u32 s7, 3")
e("s_cbranch_scc1 L_smdone")
e("s_lshl_b32 s64, s7, 10")
e("v_add_u32 v31, s64, v29")
T = 32
for w in range(4):
    for kt in range(3):
        r = T + (w*3+kt)*4
        e(f"ds_read_b128 v[{r}:{r+3}], v31 offset:{SB + (w*9 + kt*3)*1024}")
e("s_mov_b32 s64, 0x3db8aa3b")
e("s_waitcnt lgkmcnt(0)")
for k in (12, 24, 36):
    for i in range(12):
        e(f"v_add_f32 v{T+i}, v{T+i}, v{T+k+i}")
for i in range(6):
    e(f"v_cvt_pk_bf16_f32 v{T+12+i}, v{T+2*i}, v{T+2*i+1}")
for i in range(6):
    e(f"v_lshlrev_b32 v{T+2*i}, 16, v{T+12+i}")
    e(f"v_and_b32 v{T+2*i+1}, 0xffff0000, v{T+12+i}")
M = T + 24
e(f"v_max3_f32 v{M}, v{T}, v{T+1}, v{T+2}")
e(f"v_max3_f32 v{M+1}, v{T+3}, v{T+4}, v{T+5}")
e(f"v_max3_f32 v{M+2}, v{T+6}, v{T+7}, v{T+8}")
e(f"v_max3_f32 v{M+3}, v{T+9}, v{T+10}, v{T+11}")
e(f"v_max3_f32 v{M}, v{M}, v{M+1}, v{M+2}")
e(f"v_max_f32 v{M}, v{M}, v{M+3}")
def xreduce(op, R, Tm):
    e(f"v_mov_b32 v{Tm}, v{R}")
    e("s_nop 1")
    e(f"v_permlane32_swap_b32 v{R}, v{Tm}")
    e(f"v_{op}_f32 v{R}, v{R}, v{Tm}")
    e(f"v_mov_b32 v{Tm}, v{R}")
    e("s_nop 1")
    e(f"v_permlane16_swap_b32 v{R}, v{Tm}")
    e(f"v_{op}_f32 v{R}, v{R}, v{Tm}")
xreduce('max', M, M+1)
e(f"v_mul_f32 v{M}, s64, v{M}")
for i in range(12):
    e(f"v_fma_f32 v{T+i}, v{T+i}, s64, -v{M}")
for i in range(12):
    e(f"v_exp_f32 v{T+i}, v{T+i}")
e("s_nop 0")
S_ = M + 2
e(f"v_add_f32 v{S_}, v{T}, v{T+1}")
for i in range(2, 12):
    e(f"v_add_f32 v{S_}, v{S_}, v{T+i}")
xreduce('add', S_, S_+1)
e(f"v_rcp_f32 v{S_}, v{S_}")
e("s_mul_i32 s64, s7, 1536")
for i in range(12):
    e(f"v_mul_f32 v{T+i}, v{T+i}, v{S_}")
for i in range(6):
    e(f"v_cvt_pk_bf16_f32 v{T+12+i}, v{T+2*i}, v{T+2*i+1}")
e("v_add_u32 v31, s64, v29")
e(f"ds_write_b128 v31, v[{T+12}:{T+15}] offset:{PB}")
e("v_add_u32 v31, s64, v30")
e(f"ds_write_b64 v31, v[{T+16}:{T+17}] offset:{PB+1024}")
e("s_waitcnt lgkmcnt(0)")
e("L_smdone:")
if 'fine' in opts: stamp()
e("s_barrier")
if 'fine' in opts: stamp()
PF = 32; VF = 52; VPOS = 6144
for mt in range(3):
    e(f"ds_read_b128 v[{PF+mt*6}:{PF+mt*6+3}], v29 offset:{PB + mt*1536}")
    e(f"ds_read_b64 v[{PF+mt*6+4}:{PF+mt*6+5}], v30 offset:{PB + mt*1536 + 1024}")
for t in range(4):
    for kk in range(3):
        r = VF + t*6 + kk*2
        e(f"ds_read_b64_tr_b16 v[{r}:{r+1}], v{24+t} offset:{VPOS + kk*2048}")
e("s_mul_i32 s64, s7, 6144")
e("v_add_u32 v31, s64, v29")
e("s_waitcnt lgkmcnt(0)")
OA = 80
for t in range(4):
    for mt in range(3):
        acc = OA + (t*3+mt)*4
        e(f"v_mfma_f32_16x16x32_bf16 v[{acc}:{acc+3}], v[{VF+t*6}:{VF+t*6+3}], v[{PF+mt*6}:{PF+mt*6+3}], 0")
for t in range(4):
    for mt in range(3):
        acc = OA + (t*3+mt)*4
        e(f"v_mfma_f32_16x16x16_bf16 v[{acc}:{acc+3}], v[{VF+t*6+4}:{VF+t*6+5}], v[{PF+mt*6+4}:{PF+mt*6+5}], v[{acc}:{acc+3}]")
OP = 128
for u in range(2):
    for mt in range(3):
        for hf in range(2):
            acc = OA + ((2*u+hf)*3+mt)*4
            d = OP + (u*3+mt)*4 + hf*2
            if u == 0 and mt == 0 and hf == 0: e("s_nop 1")
            e(f"v_cvt_pk_bf16_f32 v{d}, v{acc}, v{acc+1}")
            e(f"v_cvt_pk_bf16_f32 v{d+1}, v{acc+2}, v{acc+3}")
for i in range(6):
    e(f"ds_write_b128 v31, v[{OP+i*4}:{OP+i*4+3}] offset:{OB + i*1024}")
e("s_waitcnt lgkmcnt(0)")
if 'fine' in opts: stamp()
e("s_barrier")
stamp()
DACC = 32; OF = 116; WO = 140
e("s_mov_b32 s59, 12288")
e("s_mul_i32 s60, s63, 3072")
def stageD(buf, mode):
    rd = []
    e(f"v_add_u32 v13, s59, v28")
    e(f"v_add_u32 v12, s60, v29")
    for mt in range(3):
        r = OF + buf*12 + mt*4
        rd.append(f"ds_read_b128 v[{r}:{r+3}], v12 offset:{OB + mt*1024}")
    for j in range(7):
        for q2 in range(2):
            r = WO + buf*28 + j*4 + q2*2
            rd.append(f"ds_read_b64_tr_b16 v[{r}:{r+1}], v13 offset:{j*32 + q2*3584}")
    mf = mfmaD(buf ^ 1, mode == 1) if mode else []
    n = max(len(rd), len(mf))
    for i in range(n):
        if i < len(mf): e(mf[i])
        if i < len(rd): e(rd[i])
    e("s_add_u32 s60, s60, 3072")
    e("s_cmp_eq_u32 s60, 24576")
    e("s_cselect_b32 s60, 0, s60")
    e("s_add_u32 s59, s59, 7168")
    e(f"s_cmp_gt_u32 s59, {RSZ-7168}")
    e("s_cselect_b32 s59, 0, s59")
def mfmaD(buf, first):
    o = []
    for j in range(7):
        for mt in range(3):
            acc = DACC + (j*3+mt)*4
            wa = WO + buf*28 + j*4
            ob = OF + buf*12 + mt*4
            c = "0" if first else f"v[{acc}:{acc+3}]"
            o.append(f"v_mfma_f32_16x16x32_bf16 v[{acc}:{acc+3}], v[{wa}:{wa+3}], v[{ob}:{ob+3}], {c}")
    return o
stageD(0, 0)
e("s_waitcnt lgkmcnt(0)")
e("s_barrier")
stageD(1, 1)
e("s_waitcnt lgkmcnt(0)")
e("s_mov_b32 s64, 3")
e("L_loopD:")
e("s_barrier")
stageD(0, 2)
e("s_waitcnt lgkmcnt(0)")
e("s_barrier")
stageD(1, 2)
e("s_sub_u32 s64, s64, 1")
e("s_waitcnt lgkmcnt(0)")
e("s_cmp_lg_u32 s64, 0")
e("s_cbranch_scc1 L_loopD")
for m in mfmaD(1, False): e(m)
e("s_lshl_b32 s59, s4, 4")
e("s_add_u32 s59, s59, s5")
e(f"s_mul_i32 s59, s59, {PSZ}")
e(f"s_mul_i32 s64, s7, {PSZ//4}")
e("s_add_u32 s59, s59, s64")
e("v_add_u32 v31, s59, v29")
srd(28, 54, 256*PSZ)
e("s_nop 3")
stamp()
SC = "" if TWOK else " sc1"
SCS = " sc1" if ("wt" in opts or not TWOK) else (" nt" if "nt" in opts else "")
if BF16P:
    for t in range(21):
        d = 120 + t*2
        e(f"v_cvt_pk_bf16_f32 v{d}, v{DACC+t*4}, v{DACC+t*4+1}")
        e(f"v_cvt_pk_bf16_f32 v{d+1}, v{DACC+t*4+2}, v{DACC+t*4+3}")
        if t % 2 == 1:
            p = t // 2
            if p % 4 == 0 and p > 0: e("v_add_u32 v31, 4096, v31")
            e(f"buffer_store_dwordx4 v[{d-2}:{d+1}], v31, s[28:31], 0 offen offset:{(p%4)*1024}{SCS}")
    e(f"buffer_store_dwordx2 v[{120+40}:{120+41}], v31, s[28:31], 0 offen offset:{(10%4)*1024}{SCS}")
else:
    for t in range(21):
        if t % 4 == 0 and t > 0:
            e("v_add_u32 v31, 4096, v31")
        e(f"buffer_store_dwordx4 v[{DACC+t*4}:{DACC+t*4+3}], v31, s[28:31], 0 offen offset:{(t%4)*1024}{SCS}")

def stamps_out(endlabel):
    e("s_waitcnt vmcnt(0)")
    e("s_memrealtime s[94:95]")
    e("s_waitcnt lgkmcnt(0)")
    e("v_cmp_eq_u32 vcc, 0, v0")
    e("s_and_saveexec_b64 s[30:31], vcc")
    e(f"s_cbranch_execz {endlabel}")
    e("s_lshl_b32 s3, s2, 4")
    e("s_add_u32 s3, s3, 0xC800000")
    e("v_mov_b32 v1, s3")
    e("v_mov_b32 v4, s92"); e("v_mov_b32 v5, s93"); e("v_mov_b32 v6, s94"); e("v_mov_b32 v7, s95")
    e("global_store_dwordx4 v1, v[4:7], s[54:55]")
    for i in range(0, nst[0], 2):
        e("v_add_u32 v1, 0x10000, v1")
        e(f"v_mov_b32 v4, s{70+2*i}"); e(f"v_mov_b32 v5, s{71+2*i}"); e(f"v_mov_b32 v6, s{72+2*i}"); e(f"v_mov_b32 v7, s{73+2*i}")
        e("global_store_dwordx4 v1, v[4:7], s[54:55]")

def reduce_code(tidreg, nwaves_active):
    srd(32, 50, 16*48*448*2)
    e(f"s_mul_i32 s64, s4, {16*PSZ}")
    if BF16P:
        e("s_mul_i32 s59, s5, 176")
        e(f"v_add_u32 v32, s59, v{tidreg}")
        e(f"v_cmp_gt_u32 vcc, 176, v{tidreg}")
        e("s_and_saveexec_b64 s[66:67], vcc")
        e("s_cbranch_execz L_rdone")
        e("v_lshlrev_b32 v36, 4, v32")
        e("v_add_u32 v36, s64, v36")
        e("s_mov_b32 s65, 0")
        for hh in range(16):
            e(f"buffer_load_dwordx4 v[{40+hh*4}:{43+hh*4}], v36, s[28:31], s65 offen{SC}")
            e(f"s_add_u32 s65, s65, {PSZ}")
        e("v_lshrrev_b32 v33, 6, v32")
        e("v_mul_u32_u24 v34, 5958, v33")
        e("v_lshrrev_b32 v34, 16, v34")
        e("v_mul_u32_u24 v35, 11, v34")
        e("v_sub_u32 v35, v33, v35")
        e("v_lshlrev_b32 v35, 1, v35")
        e("v_mul_u32_u24 v37, 21, v34")
        e("v_add_u32 v37, v37, v35")
        def outaddr(Treg, dst, tmp):
            e(f"v_mul_u32_u24 v{tmp}, 43691, v{Treg}")
            e(f"v_lshrrev_b32 v{tmp}, 17, v{tmp}")
            e(f"v_mul_u32_u24 v{dst}, 3, v{tmp}")
            e(f"v_sub_u32 v{dst}, v{Treg}, v{dst}")
            e(f"v_and_b32 v39, 15, v32")
            e(f"v_lshl_add_u32 v{dst}, v{dst}, 4, v39")
            e(f"v_bfe_u32 v39, v32, 4, 2")
            e(f"v_lshlrev_b32 v39, 2, v39")
            e(f"v_lshl_add_u32 v{tmp}, v{tmp}, 4, v39")
            e(f"s_mul_i32 s65, s4, 48")
            e(f"v_add_u32 v{dst}, s65, v{dst}")
            e(f"v_mul_u32_u24 v{dst}, 448, v{dst}")
            e(f"v_add_lshl_u32 v{dst}, v{dst}, v{tmp}, 1")
        outaddr(37, 104, 105)
        e("v_add_u32 v38, 1, v37")
        outaddr(38, 106, 107)
        e("s_waitcnt vmcnt(0)")
        A = 110
        for hh in range(16):
            for c in range(4):
                src = 40 + hh*4 + c
                if hh == 0:
                    e(f"v_lshlrev_b32 v{A+2*c}, 16, v{src}")
                    e(f"v_and_b32 v{A+2*c+1}, 0xffff0000, v{src}")
                else:
                    e(f"v_lshlrev_b32 v{A+8}, 16, v{src}")
                    e(f"v_and_b32 v{A+9}, 0xffff0000, v{src}")
                    e(f"v_add_f32 v{A+2*c}, v{A+2*c}, v{A+8}")
                    e(f"v_add_f32 v{A+2*c+1}, v{A+2*c+1}, v{A+9}")
        for c in range(4):
            e(f"v_cvt_pk_bf16_f32 v{A+10+c}, v{A+2*c}, v{A+2*c+1}")
        e(f"buffer_store_dwordx2 v[{A+10}:{A+11}], v104, s[32:35], 0 offen")
        e("v_cmp_gt_u32 vcc, 20, v35")
        e("s_and_b64 exec, exec, vcc")
        e("s_cbranch_execz L_rdone")
        e(f"buffer_store_dwordx2 v[{A+12}:{A+13}], v106, s[32:35], 0 offen")
        e("L_rdone:")
        e("s_mov_b64 exec, s[66:67]")
    else:
        e("s_mul_i32 s59, s5, 336")
        e(f"v_add_u32 v32, s59, v{tidreg}")
        def reduce_item(itemreg, base):
            e(f"v_lshlrev_b32 v{base}, 4, v{itemreg}")
            e(f"v_add_u32 v{base}, s64, v{base}")
            e("s_mov_b32 s65, 0")
            for hh in range(16):
                e(f"buffer_load_dwordx4 v[{base+4+hh*4}:{base+7+hh*4}], v{base}, s[28:31], s65 offen{SC}")
                e(f"s_add_u32 s65, s65, {PSZ}")
        def finish_item(itemreg, base):
            for hh in range(1, 16):
                for c in range(4):
                    e(f"v_add_f32 v{base+4+c}, v{base+4+c}, v{base+4+hh*4+c}")
            e(f"v_cvt_pk_bf16_f32 v{base+4}, v{base+4}, v{base+5}")
            e(f"v_cvt_pk_bf16_f32 v{base+5}, v{base+6}, v{base+7}")
            e(f"v_lshrrev_b32 v{base+8}, 6, v{itemreg}")
            e(f"v_mul_u32_u24 v{base+9}, 43691, v{base+8}")
            e(f"v_lshrrev_b32 v{base+9}, 17, v{base+9}")
            e(f"v_mul_u32_u24 v{base+10}, 3, v{base+9}")
            e(f"v_sub_u32 v{base+10}, v{base+8}, v{base+10}")
            e(f"v_and_b32 v{base+11}, 15, v{itemreg}")
            e(f"v_lshl_add_u32 v{base+10}, v{base+10}, 4, v{base+11}")
            e(f"v_bfe_u32 v{base+11}, v{itemreg}, 4, 2")
            e(f"v_lshlrev_b32 v{base+11}, 2, v{base+11}")
            e(f"v_lshl_add_u32 v{base+9}, v{base+9}, 4, v{base+11}")
            e(f"s_mul_i32 s65, s4, 48")
            e(f"v_add_u32 v{base+10}, s65, v{base+10}")
            e(f"v_mul_u32_u24 v{base+10}, 448, v{base+10}")
            e(f"v_add_lshl_u32 v{base+10}, v{base+10}, v{base+9}, 1")
            e(f"buffer_store_dwordx2 v[{base+4}:{base+5}], v{base+10}, s[32:35], 0 offen")
        reduce_item(32, 36)
        e("v_add_u32 v33, 256, v32")
        e(f"v_cmp_gt_u32 vcc, 80, v{tidreg}")
        e("s_and_saveexec_b64 s[66:67], vcc")
        e("s_cbranch_execz L_r2")
        reduce_item(33, 136)
        e("s_waitcnt vmcnt(0)")
        finish_item(33, 136)
        e("L_r2:")
        e("s_mov_b64 exec, s[66:67]")
        e("s_waitcnt vmcnt(0)")
        finish_item(32, 36)

if TWOK:
    if STAMPS: stamps_out("L_end")
    e("s_endpgm")
else:
    e("s_waitcnt vmcnt(0)")
    e("s_barrier")
    stamp()
    e("s_cmp_lg_u32 s7, 0")
    e("s_cbranch_scc1 L_waitdone")
    e("s_lshl_b32 s59, s4, 4")
    e("v_mov_b32 v32, s59")
    e("v_add_u32 v35, s5, v32")
    e("v_mov_b32 v33, 1")
    e("v_cmp_eq_u32 vcc, 0, v2")
    e("s_and_saveexec_b64 s[64:65], vcc")
    e("global_store_byte v35, v33, s[52:53] sc1")
    e("L_poll:")
    e("global_load_dwordx4 v[36:39], v32, s[52:53] sc1")
    e("s_waitcnt vmcnt(0)")
    e("v_and_b32 v36, v36, v37")
    e("v_and_b32 v38, v38, v39")
    e("v_and_b32 v36, v36, v38")
    e("s_nop 0")
    e("v_readfirstlane_b32 s59, v36")
    e("s_cmp_eq_u32 s59, 0x01010101")
    e("s_cbranch_scc1 L_polldone")
    e("s_sleep 1")
    e("s_branch L_poll")
    e("L_polldone:")
    e("s_mov_b64 exec, s[64:65]")
    e("L_waitdone:")
    e("s_barrier")
    stamp()
    reduce_code(0, 4)
    if STAMPS: stamps_out("L_end")
    e("s_endpgm")

e("L_loader:")
srd(16, 40, 16*48*448*2)
e("v_lshrrev_b32 v8, 3, v2")
e("v_mul_u32_u24 v5, 896, v8")
e("v_and_b32 v6, 7, v2")
e("v_xor_b32 v6, v6, v4")
e("v_lshl_add_u32 v5, v6, 4, v5")
e("s_mul_i32 s57, s4, 43008")
e("v_add_u32 v5, s57, v5")
e("v_xor_b32 v21, 64, v5")
e("v_add_u32 v21, 7168, v21")
e("s_and_b32 s64, s7, 1")
e("s_cmp_eq_u32 s64, 0")
e("s_cselect_b64 vcc, -1, 0")
e("v_cndmask_b32 v20, v21, v5, vcc")
srd(8, 46, 448*4096*2)
e("v_and_b32 v9, 7, v2")
e("v_and_b32 v10, 1, v4")
e("v_lshlrev_b32 v10, 1, v10")
e("v_xor_b32 v9, v9, v10")
e("v_lshlrev_b32 v9, 4, v9")
e("v_lshl_add_u32 v6, v8, 13, v9")
e("s_lshl_b32 s57, s5, 9")
e("s_lshl_b32 s64, s7, 7")
e("s_add_u32 s57, s57, s64")
e("v_add_u32 v6, s57, v6")
e("v_xor_b32 v7, 64, v6")
e("s_mul_i32 s60, s62, 524288")
for q in range(11):
    e(f"s_add_u32 s64, s7, {4*q}")
    if q == 10:
        e(f"s_cmp_ge_u32 s64, 42")
        e("s_cbranch_scc1 L_xdone")
    e(f"s_lshr_b32 s67, s64, 1")
    e(f"s_mul_i32 s65, s67, 43691")
    e("s_lshr_b32 s65, s65, 17")
    e("s_mul_i32 s66, s65, 3")
    e(f"s_sub_u32 s66, s67, s66")
    e("s_mul_i32 s66, s66, 14336")
    e("s_lshl_b32 s65, s65, 7")
    e("s_add_u32 s65, s65, s66")
    e(f"s_lshl_b32 s66, s64, 10")
    e("s_mov_b32 m0, s66")
    e("s_nop 0")
    e("buffer_load_dwordx4 v20, s[16:19], s65 offen lds")
e("L_xdone:")
late = []
def late_setup():
    srd(24, 44, 16*8*48*256*2)
    srd(20, 42, 16*8*48*256*2)
    srd(12, 48, 4096*448*2)
    e("v_lshrrev_b32 v8, 3, v2")
    e("v_and_b32 v9, 7, v2")
    e("v_lshlrev_b32 v10, 1, v4")
    e("v_xor_b32 v9, v9, v10")
    e("v_lshlrev_b32 v9, 4, v9")
    e("v_lshl_add_u32 v8, v8, 9, v9")
    e("v_add_u32 v8, s56, v8")
    e("v_lshrrev_b32 v22, 3, v2")
    e("v_and_b32 v9, 7, v2")
    e("v_xor_b32 v9, v9, v4")
    e("v_lshlrev_b32 v9, 4, v9")
    e("v_lshl_add_u32 v22, v22, 9, v9")
    e("v_add_u32 v22, s56, v22")
    e("v_xor_b32 v23, 64, v22")
    e(f"s_mul_i32 s57, s5, {256*896}")
    e("s_mul_i32 s64, s7, 224")
    e("s_add_u32 s57, s57, s64")
    magic = (1 << 20) // 14 + 1
    for i in range(7):
        e(f"v_add_u32 v17, {i*64}, v2")
        e(f"v_mul_u32_u24 v18, {magic}, v17")
        e("v_lshrrev_b32 v18, 20, v18")
        e("v_mul_u32_u24 v19, 14, v18")
        e("v_sub_u32 v19, v17, v19")
        e("v_mul_u32_u24 v18, 896, v18")
        e("v_lshlrev_b32 v19, 4, v19")
        e("v_add_u32 v18, v18, v19")
        e(f"v_add_u32 v{10+i}, s57, v18")
    e(f"s_mul_i32 s61, s63, {32*896}")
items = [('A', s, 4096) for s in range(14)] + [('K', 0, 6144), ('V', 0, 6144)] + [('D', u, 7168) for u in range(8)]
pos = 0; place = []
for (k, i, sz) in items:
    if pos + sz > RSZ: pos = 0
    place.append((pos, pos + sz)); pos += sz
assert place[14][0] == 0 and place[15][0] == 6144 and place[16][0] == 12288
released = [False] * len(items)
vmq = []; dmaq = list(range(len(items)))
def try_issue(limit=99):
    cnt = 0
    while dmaq and cnt < limit:
        i = dmaq[0]; a, b_ = place[i]
        k, idx, sz = items[i]
        if not all(released[j] or place[j][1] <= a or place[j][0] >= b_ for j in range(i)): break
        cnt += 1
        for q in range(sz // 1024):
            e(f"s_add_u32 m0, s58, {a + q*1024}")
            if k == 'A':
                e(f"s_add_u32 s59, s60, {q*8*8192}")
                e(f"buffer_load_dwordx4 v{6 + (q&1)}, s[8:11], s59 offen lds")
            elif k == 'K':
                e(f"s_mov_b32 s59, {q*8*512}")
                e(f"buffer_load_dwordx4 v{22 + (q&1)}, s[20:23], s59 offen lds")
            elif k == 'V':
                e(f"s_mov_b32 s59, {q*8*512}")
                e(f"buffer_load_dwordx4 v8, s[24:27], s59 offen lds")
            else:
                e(f"s_nop 0")
                e(f"buffer_load_dwordx4 v{10+q}, s[12:15], s61 offen lds")
            vmq.append(i)
        if k == 'A':
            e("s_add_u32 s60, s60, 262144")
            e(f"s_cmp_eq_u32 s60, {14*262144}")
            e("s_cselect_b32 s60, 0, s60")
        if k == 'D':
            e(f"s_add_u32 s61, s61, {32*896}")
            e(f"s_cmp_eq_u32 s61, {8*32*896}")
            e("s_cselect_b32 s61, 0, s61")
        dmaq.pop(0)
def wait_item(i):
    global vmq
    if i not in vmq: return
    idx = max(n for n, t in enumerate(vmq) if t == i)
    e(f"s_waitcnt vmcnt({len(vmq)-1-idx})")
    vmq = vmq[idx+1:]
NB = 25
RAMP = [2, 2, 2, 2]
need = {k: k for k in range(14)}
need[14] = 14
need[16] = 15
for u in range(8): need[17+u] = 16+u
free_after = {k: [k-1] for k in range(1, 15)}
free_after[15] = [14]
free_after[17] = [15]
for u in range(1, 8): free_after[17+u] = [16+u-1]
for k in range(NB):
    try_issue(RAMP[k] if k < len(RAMP) else 99)
    if k == 1: late_setup()
    if k in need: wait_item(need[k])
    e("s_barrier")
    for i in free_after.get(k, []): released[i] = True
assert not dmaq
e("L_end:")
e("s_endpgm")
def kd(name, vgpr):
    e(f""".section .rodata,"a"
.p2align 6
.amdhsa_kernel {name}
  .amdhsa_next_free_vgpr {vgpr}
  .amdhsa_next_free_sgpr 96
  .amdhsa_accum_offset {vgpr}
  .amdhsa_group_segment_fixed_size 0
  .amdhsa_kernarg_size 64
  .amdhsa_user_sgpr_count 2
  .amdhsa_user_sgpr_kernarg_segment_ptr 1
  .amdhsa_system_sgpr_workgroup_id_x 1
.end_amdhsa_kernel""")
if TWOK:
    e(""".text
.globl gqa_reduce_kernel
.p2align 8
.type gqa_reduce_kernel,@function
gqa_reduce_kernel:""")
    prologue_ids("L_end2")
    if STAMPS: e("s_memrealtime s[92:93]")
    e("s_waitcnt lgkmcnt(0)")
    srd(28, 54, 256*PSZ)
    reduce_code(0, 4)
    if STAMPS:
        e("s_waitcnt vmcnt(0)")
        e("s_memrealtime s[94:95]")
        e("s_waitcnt lgkmcnt(0)")
        e("v_cmp_eq_u32 vcc, 0, v0")
        e("s_and_saveexec_b64 s[30:31], vcc")
        e("s_cbranch_execz L_end2")
        e("s_lshl_b32 s3, s2, 4")
        e("s_add_u32 s3, s3, 0xCA00000")
        e("v_mov_b32 v1, s3")
        e("v_mov_b32 v4, s92"); e("v_mov_b32 v5, s93"); e("v_mov_b32 v6, s94"); e("v_mov_b32 v7, s95")
        e("global_store_dwordx4 v1, v[4:7], s[54:55]")
    e("L_end2:")
    e("s_endpgm")
kd(KN, 256)
if TWOK: kd("gqa_reduce_kernel", 208)
open(OUT, 'w').write("\n".join(L) + "\n")
print("lds", LDS, "lines", len(L), "stamps", nst[0])
```

```python
import sys
OUT = sys.argv[1]
opts = sys.argv[2:]
STAMPS = 'stamps' in opts
FINE = 'fine' in opts
L = []
def e(s): L.append(s)
nst = [0]
def stamp(f=False):
    if not STAMPS or (f and not FINE): return
    i = nst[0]; nst[0] += 1
    e(f"s_memrealtime s[{70+2*i}:{71+2*i}]")
    e("s_waitcnt lgkmcnt(0)")

XB = 0; SB = 0; PB = 36864
VB = 43008
RING = VB + 24576; RSZ = 24064
LDS = RING + 4 * RSZ
assert LDS <= 163840
PSZ = 45056
KN = "standalone__gqa_block_cached__near_ridge_kernel"
e(f"; @launch kernel={KN} grid=(256,1,1) block=(512,1,1) lds={LDS}")
e(f"; @launch kernel=gqa_reduce_kernel grid=(256,1,1) block=(256,1,1) lds=0")
e(f""".amdgcn_target "amdgcn-amd-amdhsa--gfx950"
.text
.globl {KN}
.p2align 8
.type {KN},@function
{KN}:""")
def srd(s, p, n):
    e(f"s_mov_b32 s{s}, s{p}"); e(f"s_mov_b32 s{s+1}, s{p+1}"); e(f"s_mov_b32 s{s+2}, {n}"); e(f"s_mov_b32 s{s+3}, 0x20000")
def prologue_ids(endlabel):
    e("s_cmp_ge_u32 s2, 256")
    e(f"s_cbranch_scc1 {endlabel}")
    e("s_load_dwordx8 s[40:47], s[0:1], 0")
    e("s_load_dwordx8 s[48:55], s[0:1], 32")
    e("s_and_b32 s3, s2, 7")
    e("s_lshr_b32 s4, s2, 3")
    e("s_and_b32 s4, s4, 15")
    e("s_lshr_b32 s5, s2, 7")
    e("s_lshl_b32 s6, s3, 1")
    e("s_add_u32 s5, s5, s6")
prologue_ids("L_end")
if STAMPS: e("s_memrealtime s[92:93]")
e("v_lshrrev_b32 v1, 6, v0")
e("v_and_b32 v2, 63, v0")
e("v_and_b32 v3, 15, v2")
e("v_readfirstlane_b32 s6, v1")
e("v_lshrrev_b32 v4, 4, v2")
e("s_and_b32 s7, s6, 3")
e(f"s_mul_i32 s58, s7, {RSZ}")
e(f"s_add_u32 s58, s58, {RING}")
e("s_lshl_b32 s56, s4, 3")
e("s_add_u32 s56, s56, s3")
e("s_mul_i32 s56, s56, 24576")
e("s_cmp_ge_u32 s4, 7")
e("s_cselect_b32 s61, 7, 0")
e("s_sub_u32 s62, s4, s61")
e("s_cmp_ge_u32 s62, 7")
e("s_cselect_b32 s61, 7, 0")
e("s_sub_u32 s62, s62, s61")
e("s_and_b32 s63, s4, 3")
e("s_waitcnt lgkmcnt(0)")
e("s_cmp_ge_u32 s6, 4")
e("s_cbranch_scc1 L_loader")

e("v_lshrrev_b32 v17, 2, v3")
e("v_and_b32 v18, 3, v3")
e("v_lshlrev_b32 v18, 3, v18")
e("v_add_u32 v18, s58, v18")
e("v_lshrrev_b32 v19, 1, v17")
e("v_and_b32 v24, 1, v4")
e("v_lshl_add_u32 v19, v24, 1, v19")
e("v_lshl_add_u32 v24, v4, 3, v17")
e("v_lshl_add_u32 v24, v24, 7, v18")
for j in range(4):
    e(f"v_xor_b32 v25, {j}, v19")
    e(f"v_lshl_add_u32 v{20+j}, v25, 5, v24")
e("v_lshrrev_b32 v24, 1, v4")
e("v_lshl_add_u32 v24, v24, 4, v17")
e("v_and_b32 v25, 1, v4")
e("v_lshl_add_u32 v24, v25, 2, v24")
e("v_mul_u32_u24 v28, 224, v24")
e("v_add_u32 v28, v28, v18")
e("v_lshrrev_b32 v10, 1, v3")
e("v_xor_b32 v10, v10, v4")
e("v_lshlrev_b32 v10, 4, v10")
e("v_lshl_add_u32 v10, v3, 7, v10")
e("v_xor_b32 v11, 64, v10")
e("v_add_u32 v16, s58, v10")
e("v_xor_b32 v17, 64, v16")
e("v_lshlrev_b32 v29, 4, v2")
e("v_lshlrev_b32 v30, 3, v2")
ACC = 32; XF = 80; WF = 104
for i in range(48): e(f"v_mov_b32 v{ACC+i}, 0")
e("s_mov_b32 s59, 0")
e("s_mul_i32 s60, s62, 6144")
def interleave(mf, rd):
    n = max(len(rd), len(mf))
    for i in range(n):
        if i < len(mf): e(mf[i])
        if i < len(rd): e(rd[i])
def stageA(buf, par, do_mfma):
    rd = []
    for j in range(4):
        e(f"v_add_u32 v{12+j}, s59, v{20+j}")
    e(f"v_add_u32 v18, s60, v{10+par}")
    for mt in range(3):
        r = XF + buf*12 + mt*4
        rd.append(f"ds_read_b128 v[{r}:{r+3}], v18 offset:{mt*2048}")
    for j in range(4):
        for q2 in range(2):
            r = WF + buf*16 + j*4 + q2*2
            rd.append(f"ds_read_b64_tr_b16 v[{r}:{r+1}], v{12+j} offset:{q2*512}")
    interleave(mfmaA(buf ^ 1) if do_mfma else [], rd)
    e("s_add_u32 s59, s59, 4096")
    e(f"s_cmp_eq_u32 s59, 20480")
    e("s_cselect_b32 s59, 0, s59")
    if par == 1:
        e("s_add_u32 s60, s60, 6144")
        e("s_cmp_eq_u32 s60, 43008")
        e("s_cselect_b32 s60, 0, s60")
def mfmaA(buf):
    o = []
    for j in range(4):
        for mt in range(3):
            acc = ACC + (j*3+mt)*4
            wa = WF + buf*16 + j*4
            xb = XF + buf*12 + mt*4
            o.append(f"v_mfma_f32_16x16x32_bf16 v[{acc}:{acc+3}], v[{wa}:{wa+3}], v[{xb}:{xb+3}], v[{acc}:{acc+3}]")
    return o
e("s_barrier")
stamp()
stageA(0, 0, False)
e("s_waitcnt lgkmcnt(0)")
e("s_mov_b32 s64, 6")
e("L_loopA:")
e("s_barrier")
stageA(1, 1, True)
e("s_waitcnt lgkmcnt(0)")
e("s_barrier")
stageA(0, 0, True)
e("s_sub_u32 s64, s64, 1")
e("s_waitcnt lgkmcnt(0)")
e("s_cmp_lg_u32 s64, 0")
e("s_cbranch_scc1 L_loopA")
e("s_barrier")
stageA(1, 1, True)
e("s_waitcnt lgkmcnt(0)")
e("s_barrier")
KF = 136; KPOS = 16384
for kt in range(3):
    for u in range(2):
        r = KF + (kt*2+u)*4
        e(f"ds_read_b128 v[{r}:{r+3}], v{16+u} offset:{KPOS + kt*2048}")
for m in mfmaA(1): e(m)
e("s_nop 7")
stamp()
e("s_nop 1")
QP = 160
for u in range(2):
    for mt in range(3):
        for hf in range(2):
            acc = ACC + ((2*u+hf)*3+mt)*4
            d = QP + (u*3+mt)*4 + hf*2
            e(f"v_cvt_pk_bf16_f32 v{d}, v{acc}, v{acc+1}")
            e(f"v_cvt_pk_bf16_f32 v{d+1}, v{acc+2}, v{acc+3}")
SA = 184
e("s_nop 1")
for n in range(6):
    for i in range(2):
        e(f"v_permlane32_swap_b32 v{QP+n*4+i}, v{QP+n*4+2+i}")
for n in range(6):
    for i in range(2):
        e(f"v_permlane16_swap_b32 v{QP+n*4+i}, v{QP+n*4+2+i}")
e("s_mul_i32 s64, s7, 9216")
e("v_add_u32 v31, s64, v29")
e("s_waitcnt lgkmcnt(0)")
for u in range(2):
    for kt in range(3):
        for mt in range(3):
            acc = SA + (kt*3+mt)*4
            ka = KF + (kt*2+u)*4
            qb = QP + (u*3+mt)*4
            c = "0" if u == 0 else f"v[{acc}:{acc+3}]"
            e(f"v_mfma_f32_16x16x32_bf16 v[{acc}:{acc+3}], v[{ka}:{ka+3}], v[{qb}:{qb+3}], {c}")
for t in range(9):
    if t == 0: e("s_nop 1")
    e(f"ds_write_b128 v31, v[{SA+t*4}:{SA+t*4+3}] offset:{SB + t*1024}")
e("s_waitcnt lgkmcnt(0)")
stamp(True)
e("s_barrier")
stamp(True)
e("s_cmp_ge_u32 s7, 3")
e("s_cbranch_scc1 L_smdone")
e("s_lshl_b32 s64, s7, 10")
e("v_add_u32 v31, s64, v29")
T = 32
for w in range(4):
    for kt in range(3):
        r = T + (w*3+kt)*4
        e(f"ds_read_b128 v[{r}:{r+3}], v31 offset:{SB + (w*9 + kt*3)*1024}")
e("s_mov_b32 s64, 0x3db8aa3b")
e("s_waitcnt lgkmcnt(0)")
for k in (12, 24, 36):
    for i in range(12):
        e(f"v_add_f32 v{T+i}, v{T+i}, v{T+k+i}")
for i in range(6):
    e(f"v_cvt_pk_bf16_f32 v{T+12+i}, v{T+2*i}, v{T+2*i+1}")
for i in range(6):
    e(f"v_lshlrev_b32 v{T+2*i}, 16, v{T+12+i}")
    e(f"v_and_b32 v{T+2*i+1}, 0xffff0000, v{T+12+i}")
M = T + 24
e(f"v_max3_f32 v{M}, v{T}, v{T+1}, v{T+2}")
e(f"v_max3_f32 v{M+1}, v{T+3}, v{T+4}, v{T+5}")
e(f"v_max3_f32 v{M+2}, v{T+6}, v{T+7}, v{T+8}")
e(f"v_max3_f32 v{M+3}, v{T+9}, v{T+10}, v{T+11}")
e(f"v_max3_f32 v{M}, v{M}, v{M+1}, v{M+2}")
e(f"v_max_f32 v{M}, v{M}, v{M+3}")
def xreduce(op, R, Tm):
    e(f"v_mov_b32 v{Tm}, v{R}")
    e("s_nop 1")
    e(f"v_permlane32_swap_b32 v{R}, v{Tm}")
    e(f"v_{op}_f32 v{R}, v{R}, v{Tm}")
    e(f"v_mov_b32 v{Tm}, v{R}")
    e("s_nop 1")
    e(f"v_permlane16_swap_b32 v{R}, v{Tm}")
    e(f"v_{op}_f32 v{R}, v{R}, v{Tm}")
xreduce('max', M, M+1)
e(f"v_mul_f32 v{M}, s64, v{M}")
for i in range(12):
    e(f"v_fma_f32 v{T+i}, v{T+i}, s64, -v{M}")
for i in range(12):
    e(f"v_exp_f32 v{T+i}, v{T+i}")
e("s_nop 0")
S_ = M + 2
e(f"v_add_f32 v{S_}, v{T}, v{T+1}")
for i in range(2, 12):
    e(f"v_add_f32 v{S_}, v{S_}, v{T+i}")
xreduce('add', S_, S_+1)
e(f"v_rcp_f32 v{S_}, v{S_}")
e("s_mul_i32 s64, s7, 1536")
for i in range(12):
    e(f"v_mul_f32 v{T+i}, v{T+i}, v{S_}")
for i in range(6):
    e(f"v_cvt_pk_bf16_f32 v{T+12+i}, v{T+2*i}, v{T+2*i+1}")
e("v_add_u32 v31, s64, v29")
e(f"ds_write_b128 v31, v[{T+12}:{T+15}] offset:{PB}")
e("v_add_u32 v31, s64, v30")
e(f"ds_write_b64 v31, v[{T+16}:{T+17}] offset:{PB+1024}")
e("s_waitcnt lgkmcnt(0)")
e("L_smdone:")
stamp(True)
e("s_barrier")
stamp()
DACC = 32; OF = 116; WO = 140
e("s_mov_b32 s59, 0")
e("s_mul_i32 s60, s63, 6144")
e(f"s_add_u32 s60, s60, {VB}")
def stageD(buf, par, mode):
    rd = []
    e(f"v_add_u32 v13, s59, v28")
    e(f"v_add_u32 v12, s60, v{10+par}")
    for kt in range(3):
        r = OF + buf*12 + kt*4
        rd.append(f"ds_read_b128 v[{r}:{r+3}], v12 offset:{kt*2048}")
    for j in range(7):
        for q2 in range(2):
            r = WO + buf*28 + j*4 + q2*2
            rd.append(f"ds_read_b64_tr_b16 v[{r}:{r+1}], v13 offset:{j*32 + q2*1792}")
    interleave(mfmaD(buf ^ 1, mode == 1) if mode else [], rd)
    if par == 1:
        e("s_add_u32 s60, s60, 6144")
        e(f"s_cmp_eq_u32 s60, {VB + 24576}")
        e(f"s_cselect_b32 s60, {VB}, s60")
    e("s_add_u32 s59, s59, 7168")
    e(f"s_cmp_eq_u32 s59, 21504")
    e("s_cselect_b32 s59, 0, s59")
def mfmaD(buf, first):
    o = []
    for j in range(7):
        for kt in range(3):
            acc = DACC + (j*3+kt)*4
            wa = WO + buf*28 + j*4
            ob = OF + buf*12 + kt*4
            c = "0" if first else f"v[{acc}:{acc+3}]"
            o.append(f"v_mfma_f32_16x16x32_bf16 v[{acc}:{acc+3}], v[{ob}:{ob+3}], v[{wa}:{wa+3}], {c}")
    return o
stageD(0, 0, 0)
e("s_waitcnt lgkmcnt(0)")
e("s_barrier")
stageD(1, 1, 1)
e("s_waitcnt lgkmcnt(0)")
e("s_mov_b32 s64, 3")
e("L_loopD:")
e("s_barrier")
stageD(0, 0, 2)
e("s_waitcnt lgkmcnt(0)")
e("s_barrier")
stageD(1, 1, 2)
e("s_sub_u32 s64, s64, 1")
e("s_waitcnt lgkmcnt(0)")
e("s_cmp_lg_u32 s64, 0")
e("s_cbranch_scc1 L_loopD")
PF = 196
for mt in range(3):
    e(f"ds_read_b128 v[{PF+mt*6}:{PF+mt*6+3}], v29 offset:{PB + mt*1536}")
    e(f"ds_read_b64 v[{PF+mt*6+4}:{PF+mt*6+5}], v30 offset:{PB + mt*1536 + 1024}")
for m in mfmaD(1, False): e(m)
e("s_lshl_b32 s59, s4, 4")
e("s_add_u32 s59, s59, s5")
e(f"s_mul_i32 s59, s59, {PSZ}")
e(f"s_mul_i32 s64, s7, {PSZ//4}")
e("s_add_u32 s59, s59, s64")
e("v_add_u32 v31, s59, v29")
srd(28, 54, 256*PSZ)
stamp()
FW = 214
for j in range(7):
    for kt in range(3):
        acc = DACC + (j*3+kt)*4
        d = FW + j*6 + kt*2
        e(f"v_cvt_pk_bf16_f32 v{d}, v{acc}, v{acc+1}")
        e(f"v_cvt_pk_bf16_f32 v{d+1}, v{acc+2}, v{acc+3}")
e("s_waitcnt lgkmcnt(0)")
def k32(j):
    for mt in range(3):
        acc = DACC + (j*3+mt)*4
        e(f"v_mfma_f32_16x16x32_bf16 v[{acc}:{acc+3}], v[{FW+j*6}:{FW+j*6+3}], v[{PF+mt*6}:{PF+mt*6+3}], 0")
def k16(j):
    for mt in range(3):
        acc = DACC + (j*3+mt)*4
        e(f"v_mfma_f32_16x16x16_bf16 v[{acc}:{acc+3}], v[{FW+j*6+4}:{FW+j*6+5}], v[{PF+mt*6+4}:{PF+mt*6+5}], v[{acc}:{acc+3}]")
def outtile(t):
    d = 120 + t*2
    e(f"v_cvt_pk_bf16_f32 v{d}, v{DACC+t*4}, v{DACC+t*4+1}")
    e(f"v_cvt_pk_bf16_f32 v{d+1}, v{DACC+t*4+2}, v{DACC+t*4+3}")
    if t % 2 == 1:
        p = t // 2
        if p % 4 == 0 and p > 0: e("v_add_u32 v31, 4096, v31")
        e(f"buffer_store_dwordx4 v[{d-2}:{d+1}], v31, s[28:31], 0 offen offset:{(p%4)*1024} sc1")
    if t == 20:
        e(f"buffer_store_dwordx2 v[{d}:{d+1}], v31, s[28:31], 0 offen offset:{(10%4)*1024} sc1")
for j in range(10):
    if j < 7: k32(j)
    if 1 <= j < 8: k16(j-1)
    if j >= 3:
        if j >= 8: e("s_nop 7")
        for mt in range(3): outtile((j-3)*3 + mt)
if STAMPS:
    e("s_waitcnt vmcnt(0)")
    e("s_memrealtime s[94:95]")
    e("s_waitcnt lgkmcnt(0)")
    e("v_cmp_eq_u32 vcc, 0, v0")
    e("s_and_saveexec_b64 s[30:31], vcc")
    e(f"s_cbranch_execz L_end")
    e("s_lshl_b32 s3, s2, 4")
    e("s_add_u32 s3, s3, 0xC800000")
    e("v_mov_b32 v1, s3")
    e("v_mov_b32 v4, s92"); e("v_mov_b32 v5, s93"); e("v_mov_b32 v6, s94"); e("v_mov_b32 v7, s95")
    e("global_store_dwordx4 v1, v[4:7], s[54:55]")
    for i in range(0, nst[0], 2):
        e("v_add_u32 v1, 0x10000, v1")
        e(f"v_mov_b32 v4, s{70+2*i}"); e(f"v_mov_b32 v5, s{71+2*i}"); e(f"v_mov_b32 v6, s{72+2*i}"); e(f"v_mov_b32 v7, s{73+2*i}")
        e("global_store_dwordx4 v1, v[4:7], s[54:55]")
e("s_endpgm")

e("L_loader:")
if 'prio' in opts: e("s_setprio 3")
srd(16, 40, 16*48*448*2)
e("v_lshrrev_b32 v8, 3, v2")
e("v_and_b32 v6, 7, v2")
e("v_xor_b32 v6, v6, v4")
e("v_lshlrev_b32 v9, 4, v6")
e("v_mul_u32_u24 v5, 896, v8")
e("v_add_u32 v5, v5, v9")
e("s_mul_i32 s57, s4, 43008")
e("v_add_u32 v5, s57, v5")
e("v_xor_b32 v21, 64, v5")
e("v_add_u32 v21, 7168, v21")
e("s_and_b32 s64, s7, 1")
e("s_cmp_eq_u32 s64, 0")
e("s_cselect_b64 vcc, -1, 0")
e("v_cndmask_b32 v20, v21, v5, vcc")
e("v_lshl_add_u32 v22, v8, 9, v9")
e("v_add_u32 v22, s56, v22")
e("v_xor_b32 v23, 64, v22")
e("v_add_u32 v26, 4096, v23")
e("v_cndmask_b32 v25, v26, v22, vcc")
e("s_lshl_b32 s57, s7, 7")
e("v_add_u32 v22, s57, v22")
e("v_add_u32 v23, s57, v23")
srd(8, 46, 448*4096*2)
e("v_and_b32 v9, 7, v2")
e("v_and_b32 v10, 1, v4")
e("v_lshlrev_b32 v10, 1, v10")
e("v_xor_b32 v9, v9, v10")
e("v_lshlrev_b32 v9, 4, v9")
e("v_lshl_add_u32 v6, v8, 13, v9")
e("s_lshl_b32 s57, s5, 9")
e("s_lshl_b32 s64, s7, 7")
e("s_add_u32 s57, s57, s64")
e("v_add_u32 v6, s57, v6")
e("v_xor_b32 v7, 64, v6")
e("s_mul_i32 s60, s62, 524288")
for q in range(11):
    e(f"s_add_u32 s64, s7, {4*q}")
    if q == 10:
        e(f"s_cmp_ge_u32 s64, 42")
        e("s_cbranch_scc1 L_xdone")
    e(f"s_lshr_b32 s67, s64, 1")
    e(f"s_mul_i32 s65, s67, 43691")
    e("s_lshr_b32 s65, s65, 17")
    e("s_mul_i32 s66, s65, 3")
    e(f"s_sub_u32 s66, s67, s66")
    e("s_mul_i32 s66, s66, 14336")
    e("s_lshl_b32 s65, s65, 7")
    e("s_add_u32 s65, s65, s66")
    e(f"s_lshl_b32 s66, s64, 10")
    e("s_mov_b32 m0, s66")
    e("s_nop 0")
    e("buffer_load_dwordx4 v20, s[16:19], s65 offen lds")
e("L_xdone:")
def late_setup():
    srd(24, 44, 16*8*48*256*2)
    srd(20, 42, 16*8*48*256*2)
    srd(12, 48, 4096*448*2)
    e(f"s_mul_i32 s57, s5, {256*896}")
    e("s_mul_i32 s64, s7, 224")
    e("s_add_u32 s57, s57, s64")
    magic = (1 << 20) // 14 + 1
    for i in range(7):
        e(f"v_add_u32 v17, {i*64}, v2")
        e(f"v_mul_u32_u24 v18, {magic}, v17")
        e("v_lshrrev_b32 v18, 20, v18")
        e("v_mul_u32_u24 v19, 14, v18")
        e("v_sub_u32 v19, v17, v19")
        e("v_and_b32 v27, 4, v18")
        e("v_and_b32 v28, 8, v18")
        e("v_and_b32 v18, 0x13, v18")
        e("v_lshl_or_b32 v18, v27, 1, v18")
        e("v_lshrrev_b32 v28, 1, v28")
        e("v_or_b32 v18, v18, v28")
        e("v_mul_u32_u24 v18, 896, v18")
        e("v_lshlrev_b32 v19, 4, v19")
        e("v_add_u32 v18, v18, v19")
        e(f"v_add_u32 v{10+i}, s57, v18")
    e(f"s_mul_i32 s61, s63, {64*896}")
def load_V():
    for q in range(6):
        e(f"s_add_u32 s64, s7, {4*q}")
        e(f"s_lshr_b32 s67, s64, 1")
        e(f"s_mul_i32 s65, s67, 43691")
        e("s_lshr_b32 s65, s65, 17")
        e("s_mul_i32 s66, s65, 3")
        e(f"s_sub_u32 s66, s67, s66")
        e("s_lshl_b32 s66, s66, 13")
        e("s_lshl_b32 s65, s65, 7")
        e("s_add_u32 s65, s65, s66")
        e(f"s_lshl_b32 s66, s64, 10")
        e(f"s_add_u32 m0, s66, {VB}")
        e("s_nop 0")
        e("buffer_load_dwordx4 v25, s[24:27], s65 offen lds")
        vmq.append('V')
items = [('A', s, 4096) for s in range(14)] + [('K', 0, 6144)] + [('D', u, 7168) for u in range(8)]
pos = 0; place = []
for (k, i, sz) in items:
    if pos + sz > RSZ: pos = 0
    place.append((pos, pos + sz)); pos += sz
assert place[14][0] == 16384 and place[15][0] == 0 and place[18][0] == 0, place
released = [False] * len(items)
vmq = []; dmaq = list(range(len(items)))
def try_issue(limit=99):
    cnt = 0
    while dmaq and cnt < limit:
        i = dmaq[0]; a, b_ = place[i]
        k, idx, sz = items[i]
        if not all(released[j] or place[j][1] <= a or place[j][0] >= b_ for j in range(i)): break
        cnt += 1
        for q in range(sz // 1024):
            e(f"s_add_u32 m0, s58, {a + q*1024}")
            if k == 'A':
                e(f"s_add_u32 s59, s60, {q*8*8192}")
                e(f"buffer_load_dwordx4 v{6 + (q&1)}, s[8:11], s59 offen lds")
            elif k == 'K':
                e(f"s_mov_b32 s59, {q*8*512}")
                e(f"buffer_load_dwordx4 v{22 + (q&1)}, s[20:23], s59 offen lds")
            else:
                e(f"s_nop 0")
                e(f"buffer_load_dwordx4 v{10+q}, s[12:15], s61 offen lds")
            vmq.append(i)
        if k == 'A':
            e("s_add_u32 s60, s60, 262144")
            e(f"s_cmp_eq_u32 s60, {14*262144}")
            e("s_cselect_b32 s60, 0, s60")
        if k == 'D':
            e(f"s_add_u32 s61, s61, {32*896}")
            e(f"s_cmp_eq_u32 s61, {8*32*896}")
            e("s_cselect_b32 s61, 0, s61")
        dmaq.pop(0)
def wait_item(i):
    global vmq
    if i not in vmq: return
    idx = max(n for n, t in enumerate(vmq) if t == i)
    e(f"s_waitcnt vmcnt({len(vmq)-1-idx})")
    vmq = vmq[idx+1:]
NB = 24
RAMP = [2, 2, 1, 1]
for o in opts:
    if o.startswith('ramp='): RAMP = eval(o[5:])
need = {k: [k] for k in range(14)}
need[14] = [14]
need[16] = ['V', 15]
for u in range(1, 8): need[16+u] = [15+u]
free_after = {k: [k-1] for k in range(1, 15)}
free_after[15] = [14]
for u in range(1, 8): free_after[16+u] = [15+u-1]
for k in range(NB):
    try_issue(RAMP[k] if k < len(RAMP) else 99)
    if k == 1: late_setup()
    if k == 10: load_V()
    for i in need.get(k, []): wait_item(i)
    e("s_barrier")
    for i in free_after.get(k, []): released[i] = True
assert not dmaq
e("L_end:")
e("s_endpgm")

e(""".text
.globl gqa_reduce_kernel
.p2align 8
.type gqa_reduce_kernel,@function
gqa_reduce_kernel:""")
prologue_ids("L_end2")
if STAMPS: e("s_memrealtime s[92:93]")
e("s_waitcnt lgkmcnt(0)")
srd(28, 54, 256*PSZ)
srd(32, 50, 16*48*448*2)
e(f"s_mul_i32 s64, s4, {16*PSZ}")
e("s_mul_i32 s59, s5, 176")
e(f"v_add_u32 v32, s59, v0")
e(f"v_cmp_gt_u32 vcc, 176, v0")
e("s_and_saveexec_b64 s[66:67], vcc")
e("s_cbranch_execz L_rdone")
e("v_lshlrev_b32 v36, 4, v32")
e("v_add_u32 v36, s64, v36")
e("s_mov_b32 s65, 0")
for hh in range(16):
    e(f"buffer_load_dwordx4 v[{40+hh*4}:{43+hh*4}], v36, s[28:31], s65 offen")
    e(f"s_add_u32 s65, s65, {PSZ}")
e("v_lshrrev_b32 v33, 6, v32")
e("v_mul_u32_u24 v34, 5958, v33")
e("v_lshrrev_b32 v34, 16, v34")
e("v_mul_u32_u24 v35, 11, v34")
e("v_sub_u32 v35, v33, v35")
e("v_lshlrev_b32 v35, 1, v35")
e("v_mul_u32_u24 v37, 21, v34")
e("v_add_u32 v37, v37, v35")
def outaddr(Treg, dst, tmp):
    e(f"v_mul_u32_u24 v{tmp}, 43691, v{Treg}")
    e(f"v_lshrrev_b32 v{tmp}, 17, v{tmp}")
    e(f"v_mul_u32_u24 v{dst}, 3, v{tmp}")
    e(f"v_sub_u32 v{dst}, v{Treg}, v{dst}")
    e(f"v_and_b32 v39, 15, v32")
    e(f"v_lshl_add_u32 v{dst}, v{dst}, 4, v39")
    e(f"v_bfe_u32 v39, v32, 4, 2")
    e(f"v_lshlrev_b32 v39, 2, v39")
    e(f"v_lshl_add_u32 v{tmp}, v{tmp}, 4, v39")
    e(f"s_mul_i32 s65, s4, 48")
    e(f"v_add_u32 v{dst}, s65, v{dst}")
    e(f"v_mul_u32_u24 v{dst}, 448, v{dst}")
    e(f"v_add_lshl_u32 v{dst}, v{dst}, v{tmp}, 1")
outaddr(37, 104, 105)
e("v_add_u32 v38, 1, v37")
outaddr(38, 106, 107)
e("s_waitcnt vmcnt(0)")
A = 110
for hh in range(16):
    for c in range(4):
        src = 40 + hh*4 + c
        if hh == 0:
            e(f"v_lshlrev_b32 v{A+2*c}, 16, v{src}")
            e(f"v_and_b32 v{A+2*c+1}, 0xffff0000, v{src}")
        else:
            e(f"v_lshlrev_b32 v{A+8}, 16, v{src}")
            e(f"v_and_b32 v{A+9}, 0xffff0000, v{src}")
            e(f"v_add_f32 v{A+2*c}, v{A+2*c}, v{A+8}")
            e(f"v_add_f32 v{A+2*c+1}, v{A+2*c+1}, v{A+9}")
for c in range(4):
    e(f"v_cvt_pk_bf16_f32 v{A+10+c}, v{A+2*c}, v{A+2*c+1}")
e(f"buffer_store_dwordx2 v[{A+10}:{A+11}], v104, s[32:35], 0 offen")
e("v_cmp_gt_u32 vcc, 20, v35")
e("s_and_b64 exec, exec, vcc")
e("s_cbranch_execz L_rdone")
e(f"buffer_store_dwordx2 v[{A+12}:{A+13}], v106, s[32:35], 0 offen")
e("L_rdone:")
e("s_mov_b64 exec, s[66:67]")
if STAMPS:
    e("s_waitcnt vmcnt(0)")
    e("s_memrealtime s[94:95]")
    e("s_waitcnt lgkmcnt(0)")
    e("v_cmp_eq_u32 vcc, 0, v0")
    e("s_and_saveexec_b64 s[30:31], vcc")
    e("s_cbranch_execz L_end2")
    e("s_lshl_b32 s3, s2, 4")
    e("s_add_u32 s3, s3, 0xCA00000")
    e("v_mov_b32 v1, s3")
    e("v_mov_b32 v4, s92"); e("v_mov_b32 v5, s93"); e("v_mov_b32 v6, s94"); e("v_mov_b32 v7, s95")
    e("global_store_dwordx4 v1, v[4:7], s[54:55]")
e("L_end2:")
e("s_endpgm")
def kd(name, vgpr):
    e(f""".section .rodata,"a"
.p2align 6
.amdhsa_kernel {name}
  .amdhsa_next_free_vgpr {vgpr}
  .amdhsa_next_free_sgpr 96
  .amdhsa_accum_offset {vgpr}
  .amdhsa_group_segment_fixed_size 0
  .amdhsa_kernarg_size 64
  .amdhsa_user_sgpr_count 2
  .amdhsa_user_sgpr_kernarg_segment_ptr 1
  .amdhsa_system_sgpr_workgroup_id_x 1
.end_amdhsa_kernel""")
kd(KN, 256)
kd("gqa_reduce_kernel", 128)
open(OUT, 'w').write("\n".join(L) + "\n")
print("lds", LDS, "lines", len(L), "stamps", nst[0])
```
